```python
import torch

def _softmax(x, axis=-1):
    return torch.softmax(x, dim=axis)
def _gelu(x):
    return torch.nn.functional.gelu(x, approximate="tanh")
def _silu(x):
    return torch.nn.functional.silu(x)
def _sigmoid(x):
    return torch.sigmoid(x)
def _layernorm(x, axis=-1, eps=1e-5):
    m = x.mean(dim=axis, keepdim=True)
    v = x.var(dim=axis, keepdim=True, unbiased=False)
    return (x - m) / torch.sqrt(v + eps)
def _scatter_add(tgt, idx, src, axis=0):
    return tgt.clone().index_add_(axis, idx, src)
def _segment_sum(src, seg, n):
    out = torch.zeros((n,) + src.shape[1:], dtype=src.dtype)
    return out.index_add_(0, seg, src)
def _pad(x, pw):
    flat = tuple(v for pair in reversed(pw) for v in pair)
    return torch.nn.functional.pad(x, flat)

kernel_name = 'gated_mix__mha_block_cached__glu_gated_geglu__decode'

def setup_inputs():

    _w = (lambda a: (lambda t: t.to(torch.bfloat16) if t.is_floating_point() else t)(torch.as_tensor(a)))
    def _A_setup():
        B, Sq, D = 8, 1, 576
        H, Sk, Dh = 32, 4096, 128
        return {
            "x": _w((lambda *s: torch.randn(*s, dtype=torch.bfloat16) * 0.05)(B, Sq, D)),
            "k_cache": _w((lambda *s: torch.randn(*s, dtype=torch.bfloat16) * 3.2)(B, H, Sk, Dh)),
            "v_cache": _w((lambda *s: torch.randn(*s, dtype=torch.bfloat16) * 0.05)(B, H, Sk, Dh)),
            "wq": _w((lambda *s: torch.randn(*s, dtype=torch.bfloat16) * 3.2)(D, H * Dh) * (D ** -0.5)),
            "wo": _w((lambda *s: torch.randn(*s, dtype=torch.bfloat16) * 0.05)(H * Dh, D) * ((H * Dh) ** -0.5)),
        }
    _A_in = _A_setup()

    def _B_setup():
        B, S, Dm, Df = 8, 1, 576, 4608
        return {
            "x": _w((lambda *s: torch.randn(*s, dtype=torch.bfloat16) * 0.05)(B, S, Dm)),
            "w_gate": _w((lambda *s: torch.randn(*s, dtype=torch.bfloat16) * 0.2)(Dm, Df) * (Dm ** -0.5)),
            "w_up": _w((lambda *s: torch.randn(*s, dtype=torch.bfloat16) * 0.2)(Dm, Df) * (Dm ** -0.5)),
            "w_down": _w((lambda *s: torch.randn(*s, dtype=torch.bfloat16) * 0.2)(Df, Dm) * (Df ** -0.5)),
        }
    _B_in = _B_setup()

    return {
        "A_x": _A_in["x"],
        "A_k_cache": _A_in["k_cache"],
        "A_v_cache": _A_in["v_cache"],
        "A_wq": _A_in["wq"],
        "A_wo": _A_in["wo"],
        "B_x": _B_in["x"],
        "B_w_gate": _B_in["w_gate"],
        "B_w_up": _B_in["w_up"],
        "B_w_down": _B_in["w_down"],
        "gate_w": _w((lambda *s: torch.randn(*s, dtype=torch.bfloat16) * 0.05)(576) * 16.0),
    }

def reference(A_x, A_k_cache, A_v_cache, A_wq, A_wo, B_x, B_w_gate, B_w_up, B_w_down, gate_w):
    def _A_ref(x, k_cache, v_cache, wq, wo):
        B, Sq, D = x.shape
        H, Dh = 32, 128
        q = (lambda x, *d: x.permute(*d))((x @ wq).reshape(B, Sq, H, Dh), 0, 2, 1, 3)
        scores = torch.einsum("bhqd,bhkd->bhqk", q, k_cache) * (Dh ** -0.5)
        p = _softmax(scores, axis=-1)
        o = torch.einsum("bhqk,bhkd->bhqd", p, v_cache)
        return (lambda x, *d: x.permute(*d))(o, 0, 2, 1, 3).reshape(B, Sq, H * Dh) @ wo

    def _B_ref(x, w_gate, w_up, w_down):
        g = torch.einsum("bsd,df->bsf", x, w_gate)
        u = torch.einsum("bsd,df->bsf", x, w_up)
        h = _gelu(g) * u
        return torch.einsum("bsf,fd->bsd", h, w_down)

    x = A_x
    g = _sigmoid((x * gate_w).sum(-1, keepdims=True))
    a = _A_ref(x, A_k_cache, A_v_cache, A_wq, A_wo)
    b = _B_ref(x, B_w_gate, B_w_up, B_w_down)
    return g * a + (1 - g) * b
```

```python
import re

def parse_regs(tok):
    tok = tok.strip()
    m = re.fullmatch(r"([vs])\[(\d+):(\d+)\]", tok)
    if m:
        return [(m.group(1), i) for i in range(int(m.group(2)), int(m.group(3)) + 1)]
    m = re.fullmatch(r"-?([vs])(\d+)", tok)
    if m:
        return [(m.group(1), int(m.group(2)))]
    if tok == "vcc":
        return [("s", "vcc")]
    if tok in ("exec", "exec_lo", "exec_hi"):
        return [("s", "exec")]
    return []

TRANS = ("v_exp_f32", "v_log_f32", "v_rcp_f32", "v_rsq_f32", "v_sqrt_f32", "v_sin_f32", "v_cos_f32")

class Ins:
    __slots__ = ("text", "op", "kind", "dst", "src", "dpp", "srcC", "srcAB", "label", "target", "states", "wide")
    def __init__(self, text):
        self.text = text
        self.label = None; self.target = None; self.dpp = False; self.dst = []; self.src = []
        self.srcC = []; self.srcAB = []; self.states = 1; self.wide = False
        t = text.split(";")[0].strip()
        if t.endswith(":"):
            self.kind = "label"; self.label = t[:-1]; self.op = ""; self.states = 0
            return
        parts = t.split(None, 1)
        op = parts[0]; self.op = op
        rest = parts[1] if len(parts) > 1 else ""
        ops = [o.strip() for o in rest.split(",")] if rest else []
        if ops:
            last = ops[-1].split()
            ops[-1] = last[0] if last else ""
            mods = last[1:]
        else:
            mods = []
        R = [parse_regs(o) for o in ops]
        if op == "s_nop":
            self.kind = "nop"; self.states = int(ops[0]) + 1
        elif op.startswith("s_cbranch") or op == "s_branch":
            self.kind = "branch"; self.target = ops[0]
        elif op in ("s_waitcnt", "s_barrier", "s_endpgm", "s_sleep", "s_setprio"):
            self.kind = "misc"
        elif op.startswith("s_cmp"):
            self.kind = "salu"; self.src = sum(R, [])
        elif op.startswith("s_load") or op in ("s_memtime", "s_memrealtime"):
            self.kind = "smem"; self.dst = R[0]; self.src = sum(R[1:], [])
        elif op.startswith("s_"):
            self.kind = "salu"; self.dst = R[0]; self.src = sum(R[1:], [])
        elif op.startswith("v_mfma"):
            self.kind = "mfma"; self.dst = R[0]; self.srcAB = R[1] + R[2]; self.srcC = R[3]; self.src = self.srcAB + self.srcC
        elif op.startswith("buffer_load") or op.startswith("global_load"):
            self.kind = "vmem"; self.dst = R[0]; self.src = sum(R[1:], [])
        elif op.startswith("buffer_store") or op.startswith("global_store") or op.startswith("buffer_atomic") or op.startswith("global_atomic"):
            self.kind = "vmem"; self.src = sum(R, [])
            if "x4" in op or "x3" in op:
                self.wide = True
            if "atomic" in op and "sc0" in mods:
                self.dst = R[0]
        elif op.startswith("ds_read") or op.startswith("ds_bpermute") or "_rtn_" in op:
            self.kind = "ds"; self.dst = R[0]; self.src = sum(R[1:], [])
        elif op.startswith("ds_"):
            self.kind = "ds"; self.src = sum(R, [])
        elif op.startswith("v_"):
            self.kind = "valu"
            self.dst = list(R[0]); self.src = sum(R[1:], [])
            if "permlane" in op:
                self.dst = R[0] + R[1]; self.src = R[0] + R[1]
            if op.startswith("v_dot2c") or op.startswith("v_fmac"):
                self.src = self.src + R[0]
            if "_dpp" in op:
                self.dpp = True
            if op.startswith("v_cndmask") and len(ops) == 4:
                pass
        else:
            raise ValueError("unknown instr " + text)

def need(prod, cons):
    n = 0
    pd = set(prod.dst)
    if not pd and not (prod.kind == "vmem" and prod.wide) and prod.kind != "mfma":
        return 0
    cs = set(cons.src); cd = set(cons.dst)
    pv = {r for r in pd if r[0] == "v"}; ps = {r for r in pd if r[0] == "s"}
    if prod.kind == "valu":
        isdot = prod.op.startswith("v_dot2")
        if pv & cs:
            if cons.kind == "valu" and cons.dpp: n = max(n, 2)
            if cons.kind == "mfma": n = max(n, 2)
            if cons.kind == "valu" and ("readlane" in cons.op or "readfirstlane" in cons.op): n = max(n, 1)
            if cons.kind == "valu" and "permlane" in cons.op: n = max(n, 2)
            if prod.op.replace("_e32", "").replace("_e64", "") in TRANS and cons.kind in ("valu",) : n = max(n, 1)
            if prod.op.replace("_e32", "").replace("_e64", "") in TRANS and cons.kind in ("mfma",) : n = max(n, 2)
        if isdot and (pv & (cs | cd)):
            if cons.op == prod.op:
                ab = set(parse_ab(cons))
                if pv & ab: n = max(n, 3)
            else:
                n = max(n, 3)
        if ps & cs:
            if cons.kind == "valu": n = max(n, 4 if ("readlane" in cons.op or "writelane" in cons.op) else 2)
            if cons.kind == "vmem": n = max(n, 5)
            if cons.kind in ("salu", "smem"): n = max(n, 2)
        if ("s", "vcc") in ps and cons.kind == "valu" and cons.op.startswith("v_cndmask"): n = max(n, 2)
        if ("s", "vcc") in ps and cons.kind == "branch": n = max(n, 5)
    if prod.kind == "mfma":
        passes = 8 if ("16x16x4_f32" in prod.op or "32x32x16" in prod.op) else 4
        big = {4: 8, 8: 12}[passes]
        if cons.kind == "mfma":
            if pv & set(cons.srcAB): n = max(n, big)
            if pv & set(cons.srcC):
                if set(cons.srcC) == pv and cons.op == prod.op: pass
                else: n = max(n, big)
        elif cons.kind in ("valu", "vmem", "ds"):
            if pv & (cs | cd): n = max(n, big)
        if cons.kind == "valu" and (set(prod.srcC) & cd): n = max(n, {4: 3, 8: 7}[passes])
    if prod.kind == "vmem" and prod.wide:
        if cons.kind == "valu" and (set(prod.src) & cd): n = max(n, 2)
    return n

def parse_ab(ins):
    t = ins.text.split(";")[0].strip().split(None, 1)[1]
    ops = [o.strip().split()[0] for o in t.split(",")]
    return parse_regs(ops[1]) + parse_regs(ops[2])

class Asm:
    def __init__(self):
        self.ins = []
        self.vm = []
        self.vm_done = 0
    def e(self, text):
        for line in text.strip().split("\n"):
            line = line.strip()
            if line and not line.startswith(";"):
                self.ins.append(Ins(line))
    def vmem(self, text):
        self.e(text)
        self.vm.append(len(self.vm))
        return len(self.vm) - 1
    def wait_vm(self, opid):
        if opid < self.vm_done:
            return
        n = len(self.vm) - 1 - opid
        assert n <= 63
        self.e("s_waitcnt vmcnt(%d)" % n)
        self.vm_done = opid + 1
    def wait_vm_all(self):
        self.e("s_waitcnt vmcnt(0)")
        self.vm_done = len(self.vm)
    def finish(self):
        out = []
        branch_src = {}
        WINDOW = 14
        def required(cons, idx, dist, seen):
            req = 0
            i = idx
            while i >= 0 and dist < WINDOW:
                p = out[i]
                if p.kind == "label":
                    for b in branch_src.get(p.label, []):
                        if (b, dist) not in seen:
                            seen.add((b, dist))
                            req = max(req, required(cons, b - 1, dist + 1, seen))
                    if i > 0 and out[i - 1].op in ("s_branch", "s_endpgm"):
                        return req
                else:
                    n = need(p, cons)
                    if n > dist:
                        req = max(req, n - dist)
                    dist += p.states
                i -= 1
            return req
        for ins in self.ins:
            if ins.kind not in ("label", "nop", "misc"):
                r = required(ins, len(out) - 1, 0, set())
                while r > 0:
                    k = min(r, 16)
                    out.append(Ins("s_nop %d" % (k - 1)))
                    r -= k
            out.append(ins)
            if ins.kind == "branch":
                branch_src.setdefault(ins.target, []).append(len(out) - 1)
        return [("" if i.kind == "label" else "    ") + i.text for i in out]
```

```python
import sys, struct
from asmlib import Asm
REF = open("gated_mix__mha_block_cached__glu_gated_geglu__decode.s.ref").read()
HDR = REF.split("; Override launch")[0]
KN = "gated_mix__mha_block_cached__glu_gated_geglu__decode_kernel"

def f32(x):
    return "0x%08x" % struct.unpack("<I", struct.pack("<f", x))[0]

vLane, vKV, vR16, vG = 0, 1, 2, 3
vMask = 4
vQ = 8
vXc, vM, vL, vGate, vOmg, vW, vT0, vT1 = 12, 13, 14, 15, 16, 17, 18, 19
vO = 20
vB = 24
vAcc = 32
vS = 32
vT = 40
vU = 44
vN, vAl = 46, 47
vX0 = 48
RING0 = 56
sW, sBt, sH = 3, 4, 5
sK, sV, sWQ, sWG, sWU, sWD, sWO = 8, 12, 16, 20, 24, 28, 32
pX, pK, pV, pWQ, pWO, pBX, pWG, pWU, pWD, pGW, pOUT, pDBG, pWS = 36, 38, 40, 42, 44, 46, 48, 50, 52, 54, 56, 58, 60
sX, sGW, sWS, sOUT, sDBG = 64, 68, 72, 76, 80
sKV, sOff, sTmp = 84, 85, 86
sR = 88
sA, sB2, sC = 92, 93, 94
sScale, sLog2e = 96, 97
sWsOff = 98
sHi = 99
QP = 0
QB = 8192
HB = QB + 512
OP = HB + 512
ML = OP + 8448
GU = ML + 128
DP = GU + 24576
AP = DP + 40960
LDS_BYTES = AP + 40960

def srd(x):
    return "s[%d:%d]" % (x, x + 3)
def vr(x, n=4):
    return "v[%d:%d]" % (x, x + n - 1)

class Item:
    def __init__(self, issue, consume=None, pre=None, post=None, defer=False):
        self.issue = issue; self.consume = consume; self.pre = pre; self.post = post; self.defer = defer
        self.op = None

def gen(R=18, stamps=False, dbg=False):
    a = Asm(); e = a.e
    NB = 8
    def make_srd(d, p, off_sgpr, size):
        if off_sgpr is None:
            e("s_mov_b32 s%d, s%d" % (d, p)); e("s_and_b32 s%d, s%d, 0xffff" % (d + 1, p + 1))
        else:
            e("s_add_u32 s%d, s%d, s%d" % (d, p, off_sgpr)); e("s_addc_u32 s%d, s%d, 0" % (d + 1, p + 1))
            e("s_and_b32 s%d, s%d, 0xffff" % (d + 1, d + 1))
        e("s_mov_b32 s%d, 0x%x" % (d + 2, size)); e("s_mov_b32 s%d, 0x20000" % (d + 3))
    def exec_lo32():
        e("s_mov_b32 exec_lo, -1"); e("s_mov_b32 exec_hi, 0")
    def exec_all():
        e("s_mov_b64 exec, -1")
    def bf16r2(x, y, t):
        e("v_cvt_pk_bf16_f32 v%d, v%d, v%d" % (t, x, y))
        e("v_lshlrev_b32 v%d, 16, v%d" % (x, t))
        e("v_and_b32 v%d, s%d, v%d" % (y, sHi, t))
    def bf16r(x):
        e("v_cvt_pk_bf16_f32 v%d, v%d, v%d" % (x, x, x))
        e("v_lshlrev_b32 v%d, 16, v%d" % (x, x))
    def row_allreduce(op, regs):
        for sh in (1, 2, 4, 8):
            for r in regs:
                e("%s_dpp v%d, v%d, v%d row_ror:%d row_mask:0xf bank_mask:0xf" % (op, r, r, r, sh))
    def cross_row(op, x, init=None):
        for k in range(4):
            e("v_readlane_b32 s%d, v%d, %d" % (sR + k, x, 16 * k))
        if init is None:
            e("v_mov_b32 v%d, s%d" % (x, sR))
            ks = (1, 2, 3)
        else:
            e("%s v%d, s%d, v%d" % (op, x, sR, init))
            ks = (1, 2, 3)
        for k in ks:
            e("%s v%d, s%d, v%d" % (op, x, sR + k, x))
    def buildB(bset, coef, lane=None):
        for w in range(4):
            if lane is None:
                e("v_and_b32 v%d, v%d, v%d" % (vB + 4 * bset + w, coef, vMask + w))
            else:
                e("v_and_b32_dpp v%d, v%d, v%d row_newbcast:%d row_mask:0xf bank_mask:0xf" % (vB + 4 * bset + w, coef, vMask + w, lane))
    def mfma(acc, bset, slot, first=False):
        e("v_mfma_f32_16x16x32_bf16 %s, %s, %s, %s" % (vr(acc), vr(vB + 4 * bset), vr(slot), "0" if first else vr(acc)))
    def barrier():
        e("s_waitcnt lgkmcnt(0)"); e("s_barrier")
    lab = [0]
    def newlabel(s):
        lab[0] += 1
        return "L_%s_%d" % (s, lab[0])

    e("s_cmp_ge_u32 s2, 256"); e("s_cbranch_scc1 L_done")
    e("s_load_dwordx16 s[36:51], s[0:1], 0")
    e("s_load_dwordx8 s[52:59], s[0:1], 64")
    e("s_load_dwordx2 s[60:61], s[0:1], 96")
    e("v_lshrrev_b32 v%d, 6, v0" % vW)
    e("v_and_b32 v0, 63, v0")
    e("v_readfirstlane_b32 s%d, v%d" % (sW, vW))
    e("s_and_b32 s6, s2, 7"); e("s_lshr_b32 s7, s2, 3"); e("s_and_b32 s%d, s7, 3" % sH)
    e("s_lshl_b32 s6, s6, 2"); e("s_add_u32 s%d, s%d, s6" % (sH, sH)); e("s_lshr_b32 s%d, s7, 2" % sBt)
    e("s_mov_b32 s%d, %s" % (sScale, f32(128 ** -0.5)))
    e("s_mov_b32 s%d, %s" % (sLog2e, f32(1.4426950408889634)))
    e("s_mov_b32 s%d, 0xffff0000" % sHi)
    e("v_and_b32 v%d, 15, v0" % vT0)
    e("v_lshrrev_b32 v%d, 4, v0" % vG)
    e("v_lshlrev_b32 v%d, 4, v%d" % (vR16, vT0))
    e("v_lshlrev_b32 v%d, 4, v0" % vKV)
    e("s_lshl_b32 s6, s%d, 13" % sW)
    e("v_add_u32 v%d, s6, v%d" % (vKV, vKV))
    e("s_mul_i32 s7, s%d, 36" % sW)
    e("v_min_u32 v%d, 8, v%d" % (vT1, vT0))
    e("v_lshl_add_u32 v%d, v%d, 2, v%d" % (vT1, vT1, vG))
    e("v_add_u32 v%d, s7, v%d" % (vT1, vT1))
    e("v_lshlrev_b32 v%d, 1, v%d" % (vT1, vT1))
    e("v_add_u32 v%d, s7, v%d" % (vW, vG))
    e("v_lshlrev_b32 v%d, 13, v%d" % (vW, vW))
    e("v_add_u32 v%d, v%d, v%d" % (vW, vW, vR16))
    e("s_lshl_b32 s%d, s%d, 5" % (sKV, sBt)); e("s_add_u32 s%d, s%d, s%d" % (sKV, sKV, sH)); e("s_lshl_b32 s%d, s%d, 20" % (sKV, sKV))
    e("s_mul_i32 s%d, s%d, 1152" % (sA, sBt))
    e("s_lshl_b32 s%d, s%d, 8" % (sB2, sH))
    e("s_waitcnt lgkmcnt(0)")
    make_srd(sX, pX, sA, 1152)
    opx = a.vmem("buffer_load_ushort v%d, v%d, %s, 0 offen" % (vXc, vT1, srd(sX)))
    make_srd(sWQ, pWQ, sB2, 575 * 8192 + 256)
    make_srd(sK, pK, None, 0x10000000)
    make_srd(sV, pV, None, 0x10000000)

    late = []

    stream = []
    state = {"soff": None, "wtype": "wq"}
    def soff(val):
        if val == 0:
            return "0"
        if state["soff"] != val:
            e("s_mov_b32 s%d, 0x%x" % (sTmp, val)); state["soff"] = val
        return "s%d" % sTmp
    def kvsoff(val):
        if state.get("kv") != val:
            e("s_add_u32 s%d, s%d, 0x%x" % (sOff, sKV, val)); state["kv"] = val
        return "s%d" % sOff

    def wq_item(i):
        def issue(s):
            return a.vmem("buffer_load_dwordx4 %s, v%d, %s, %s offen" % (vr(s), vW, srd(sWQ), soff(i * 32768)))
        def pre():
            if i == 0:
                a.wait_vm(opx)
                e("v_lshl_or_b32 v%d, v%d, 16, v%d" % (vXc, vXc, vXc))
            buildB(i & 1, vXc, i)
        def consume(s):
            mfma(vAcc, i & 1, s, first=(i == 0))
        def post():
            if i != 8: return
            e("s_lshl_b32 s6, s%d, 9" % sW)
            e("v_lshlrev_b32 v%d, 1, v%d" % (vT0, vR16))
            e("v_lshl_add_u32 v%d, v%d, 4, v%d" % (vT0, vG, vT0))
            e("v_add_u32 v%d, s6, v%d" % (vT1, vT0))
            exec_lo32()
            e("ds_write_b128 v%d, %s offset:%d" % (vT1, vr(vAcc), QP))
            exec_all()
            barrier()
            L = newlabel("qred")
            e("s_cmp_ge_u32 s%d, 2" % sW); e("s_cbranch_scc1 %s" % L)
            e("s_lshl_b32 s6, s%d, 6" % sW)
            e("v_add_u32 v%d, s6, v0" % vT1)
            e("v_lshlrev_b32 v%d, 2, v%d" % (vX0, vT1))
            for w in range(16):
                e("ds_read_b32 v%d, v%d offset:%d" % (vAcc + w, vX0, QP + 512 * w))
            e("s_waitcnt lgkmcnt(0)")
            for st in (8, 4, 2, 1):
                for w in range(st):
                    e("v_add_f32 v%d, v%d, v%d" % (vAcc + w, vAcc + w, vAcc + w + st))
            e("v_cvt_pk_bf16_f32 v%d, v%d, v%d" % (vAcc, vAcc, vAcc))
            e("v_lshlrev_b32 v%d, 1, v%d" % (vT1, vT1))
            e("ds_write_b16 v%d, v%d offset:%d" % (vT1, vAcc, QB))
            e("%s:" % L)
            barrier()
            e("ds_read_b128 %s, v%d offset:%d" % (vr(vQ), vR16, QB))
            e("s_waitcnt lgkmcnt(0)")
            if dbg:
                e("buffer_store_dwordx4 %s, v%d, %s, s95 offen" % (vr(vQ), vR16, srd(sWS)))
        return Item(issue, consume, pre, post)
    for i in range(9):
        stream.append(wq_item(i))

    BANK_OF = {0: 0, 1: 2, 2: 1, 3: 3}
    def k_item(t, i):
        def issue(s):
            so = kvsoff(t * 131072 + (i // 4) * 4096)
            return a.vmem("buffer_load_dwordx4 %s, v%d, %s, %s offen offset:%d nt" % (vr(s), vKV, srd(sK), so, (i % 4) * 1024))
        def consume(s):
            e("v_dot2_f32_bf16 v%d, v%d, v%d, 0" % (vS + i, s, vQ))
            for d in (1, 2, 3):
                e("v_dot2_f32_bf16 v%d, v%d, v%d, v%d" % (vS + i, s + d, vQ + d, vS + i))
        def post():
            if i != 7: return
            for half in (0, 1):
                s0 = vS + 4 * half; t0 = vT + 2 * half
                e("v_add_f32_dpp v%d, v%d, v%d row_ror:8 row_mask:0xf bank_mask:0x3" % (t0, s0, s0))
                e("v_add_f32_dpp v%d, v%d, v%d row_ror:8 row_mask:0xf bank_mask:0xc" % (t0, s0 + 1, s0 + 1))
                e("v_add_f32_dpp v%d, v%d, v%d row_ror:8 row_mask:0xf bank_mask:0x3" % (t0 + 1, s0 + 2, s0 + 2))
                e("v_add_f32_dpp v%d, v%d, v%d row_ror:8 row_mask:0xf bank_mask:0xc" % (t0 + 1, s0 + 3, s0 + 3))
            for half in (0, 1):
                t0 = vT + 2 * half
                e("v_add_f32_dpp v%d, v%d, v%d row_half_mirror row_mask:0xf bank_mask:0x5" % (vU + half, t0, t0))
                e("v_add_f32_dpp v%d, v%d, v%d row_half_mirror row_mask:0xf bank_mask:0xa" % (vU + half, t0 + 1, t0 + 1))
            for qp in ("[1,0,3,2]", "[2,3,0,1]"):
                for half in (0, 1):
                    e("v_add_f32_dpp v%d, v%d, v%d quad_perm:%s row_mask:0xf bank_mask:0xf" % (vU + half, vU + half, vU + half, qp))
            bf16r2(vU, vU + 1, vT)
            e("v_mul_f32 v%d, s%d, v%d" % (vU, sScale, vU)); e("v_mul_f32 v%d, s%d, v%d" % (vU + 1, sScale, vU + 1))
            bf16r2(vU, vU + 1, vT)
            e("v_max_f32 v%d, v%d, v%d" % (vN, vU, vU + 1))
            e("v_max_f32_dpp v%d, v%d, v%d row_ror:4 row_mask:0xf bank_mask:0xf" % (vN, vN, vN))
            e("v_max_f32_dpp v%d, v%d, v%d row_ror:8 row_mask:0xf bank_mask:0xf" % (vN, vN, vN))
            cross_row("v_max_f32", vN, init=vM)
            e("v_sub_f32 v%d, v%d, v%d" % (vAl, vM, vN))
            e("v_sub_f32 v%d, v%d, v%d" % (vU, vU, vN))
            e("v_sub_f32 v%d, v%d, v%d" % (vU + 1, vU + 1, vN))
            for r in (vAl, vU, vU + 1):
                e("v_mul_f32 v%d, s%d, v%d" % (r, sLog2e, r))
            for r in (vAl, vU, vU + 1):
                e("v_exp_f32 v%d, v%d" % (r, r))
            e("v_mov_b32 v%d, v%d" % (vM, vN))
            e("v_fma_f32 v%d, v%d, v%d, v%d" % (vL, vL, vAl, vU))
            e("v_add_f32 v%d, v%d, v%d" % (vL, vL, vU + 1))
            for k in range(4):
                e("v_mul_f32 v%d, v%d, v%d" % (vO + k, vO + k, vAl))
            e("v_cvt_pk_bf16_f32 v%d, v%d, v%d" % (vU, vU, vU))
            e("v_cvt_pk_bf16_f32 v%d, v%d, v%d" % (vU + 1, vU + 1, vU + 1))
        return Item(issue, consume, None, post)
    def v_item(t, i):
        def issue(s):
            so = kvsoff(t * 131072 + (i // 4) * 4096)
            return a.vmem("buffer_load_dwordx4 %s, v%d, %s, %s offen offset:%d nt" % (vr(s), vKV, srd(sV), so, (i % 4) * 1024))
        def pre():
            buildB(i & 1, vU + (i >> 2), 4 * BANK_OF[i & 3])
        def consume(s):
            mfma(vO, i & 1, s)
        return Item(issue, consume, pre, None)
    def add_kv(t):
        for i in range(8): stream.append(k_item(t, i))
        for i in range(8): stream.append(v_item(t, i))

    gslots = []
    def gv_item(j):
        def issue(s):
            if j == 0:
                e("v_lshlrev_b32 v%d, 4, v0" % vW)
            return a.vmem("buffer_load_dwordx4 %s, v%d, %s, 0 offen offset:%d" % (vr(s), vW, srd(sX if j < 2 else sGW), (j & 1) * 1024))
        def consume(s):
            gslots.append(s)
            if j != 3: return
            acc = vAcc; x0, x1, g0, g1, pk = vAcc + 1, vAcc + 2, vAcc + 3, vAcc + 4, vAcc + 5
            e("v_mov_b32 v%d, 0" % acc)
            for p in (0, 1):
                for d in range(4):
                    xs = gslots[p] + d; gs = gslots[2 + p] + d
                    e("v_lshlrev_b32 v%d, 16, v%d" % (x0, xs)); e("v_and_b32 v%d, s%d, v%d" % (x1, sHi, xs))
                    e("v_lshlrev_b32 v%d, 16, v%d" % (g0, gs)); e("v_and_b32 v%d, s%d, v%d" % (g1, sHi, gs))
                    e("v_mul_f32 v%d, v%d, v%d" % (x0, x0, g0)); e("v_mul_f32 v%d, v%d, v%d" % (x1, x1, g1))
                    bf16r2(x0, x1, pk)
                    e("v_add_f32 v%d, v%d, v%d" % (acc, acc, x0)); e("v_add_f32 v%d, v%d, v%d" % (acc, acc, x1))
            row_allreduce("v_add_f32", [acc])
            cross_row("v_add_f32", acc)
            bf16r(acc)
            e("v_mul_f32 v%d, s%d, v%d" % (acc, sLog2e, acc))
            e("v_sub_f32 v%d, 0, v%d" % (acc, acc))
            e("v_exp_f32 v%d, v%d" % (acc, acc))
            e("v_add_f32 v%d, 1.0, v%d" % (acc, acc))
            e("v_rcp_f32 v%d, v%d" % (vGate, acc))
            bf16r(vGate)
            e("v_sub_f32 v%d, 1.0, v%d" % (vOmg, vGate))
            bf16r(vOmg)
        return Item(issue, consume, None, None, defer=(j != 3))

    def gu_item(i, which):
        def issue(s):
            if i == 0 and which == 0:
                e("s_mul_i32 s7, s%d, 36" % sW)
                e("v_add_u32 v%d, s7, v%d" % (vW, vG))
                e("v_mul_u32_u24 v%d, 9216, v%d" % (vW, vW))
                e("v_and_b32 v%d, 16, v%d" % (vX0 + 7, vR16))
                e("v_add3_u32 v%d, v%d, v%d, 64" % (vX0 + 7, vX0 + 7, vW))
                e("v_add_u32 v%d, 192, v%d" % (vX0 + 7, vX0 + 7))
                e("v_add_u32 v%d, v%d, v%d" % (vW, vW, vR16))
            so = soff(i * 36864)
            if which < 2:
                return a.vmem("buffer_load_dwordx4 %s, v%d, %s, %s offen" % (vr(s), vW, srd(sWG if which == 0 else sWU), so))
            e("s_mov_b32 exec_lo, 0x00030003"); e("s_mov_b32 exec_hi, 0x00030003")
            a.vmem("buffer_load_dwordx4 %s, v%d, %s, %s offen" % (vr(s), vX0 + 7, srd(sWG), so))
            e("s_mov_b32 exec_lo, 0x000c000c"); e("s_mov_b32 exec_hi, 0x000c000c")
            op = a.vmem("buffer_load_dwordx4 %s, v%d, %s, %s offen" % (vr(s), vX0 + 7, srd(sWU), so))
            exec_all()
            return op
        def pre():
            if which == 0:
                buildB(i & 1, vXc, i)
        def consume(s):
            mfma(vAcc + 4 * which, i & 1, s, first=(i == 0))
        def post():
            if not (i == 8 and which == 2): return
            e("s_mul_i32 s6, s%d, 1536" % sW)
            e("v_add_u32 v%d, s6, v%d" % (vT1, vT0))
            exec_lo32()
            for c in range(3):
                e("ds_write_b128 v%d, %s offset:%d" % (vT1, vr(vAcc + 4 * c), GU + 512 * c))
            exec_all()
            barrier()
            L = newlabel("hred")
            e("s_cmp_ge_u32 s%d, 3" % sW); e("s_cbranch_scc1 %s" % L)
            e("s_lshl_b32 s6, s%d, 6" % sW)
            e("v_add_u32 v%d, s6, v0" % vT1)
            e("s_cmp_eq_u32 s%d, 2" % sW)
            e("s_cselect_b32 s6, 512, 0"); e("s_cselect_b32 s7, 64, 0"); e("s_add_u32 s7, s7, 512")
            e("v_lshlrev_b32 v%d, 2, v%d" % (vX0, vT1))
            e("v_add_u32 v%d, s7, v%d" % (vX0 + 1, vX0))
            e("v_add_u32 v%d, s6, v%d" % (vX0, vX0))
            for base, ad, dst in ((0, vX0, vX0 + 2), (0, vX0 + 1, vX0 + 3)):
                for w in range(16):
                    e("ds_read_b32 v%d, v%d offset:%d" % (vAcc + w, ad, GU + 1536 * w))
                e("s_waitcnt lgkmcnt(0)")
                for st in (8, 4, 2):
                    for w in range(st):
                        e("v_add_f32 v%d, v%d, v%d" % (vAcc + w, vAcc + w, vAcc + w + st))
                e("v_add_f32 v%d, v%d, v%d" % (dst, vAcc, vAcc + 1))
            g, u = vX0 + 2, vX0 + 3
            bf16r2(g, u, vAcc)
            y = vAcc
            c0 = 0.7978845608028654; c1 = c0 * 0.044715
            e("v_mul_f32 v%d, v%d, v%d" % (y, g, g))
            e("s_mov_b32 s6, %s" % f32(c1)); e("v_mov_b32 v%d, %s" % (vAcc + 1, f32(c0)))
            e("v_fma_f32 v%d, v%d, s6, v%d" % (y, y, vAcc + 1))
            e("v_mul_f32 v%d, v%d, v%d" % (y, y, g))
            e("v_mul_f32 v%d, %s, v%d" % (y, f32(-2.0 * 1.4426950408889634), y))
            e("v_exp_f32 v%d, v%d" % (y, y))
            e("v_add_f32 v%d, 1.0, v%d" % (y, y))
            e("v_rcp_f32 v%d, v%d" % (y, y))
            e("v_mul_f32 v%d, v%d, v%d" % (y, y, g))
            bf16r(y)
            e("v_mul_f32 v%d, v%d, v%d" % (y, y, u))
            if dbg:
                e("v_lshlrev_b32 v%d, 2, v%d" % (vAcc + 2, vT1))
                e("buffer_store_dword v%d, v%d, %s, s95 offen offset:1024" % (y, vAcc + 2, srd(sWS)))
                e("buffer_store_dword v%d, v%d, %s, s95 offen offset:2048" % (g, vAcc + 2, srd(sWS)))
                e("s_nop 3")
            e("v_cvt_pk_bf16_f32 v%d, v%d, v%d" % (y, y, y))
            e("v_cmp_gt_u32 vcc, 144, v%d" % vT1)
            e("v_cndmask_b32 v%d, 0, v%d, vcc" % (y, y))
            e("v_lshlrev_b32 v%d, 1, v%d" % (vT1, vT1))
            e("ds_write_b16 v%d, v%d offset:%d" % (vT1, y, HB))
            e("%s:" % L)
        return Item(issue, consume, pre, post)

    def publish(part, ldsbase):
        e("s_lshl_b32 s6, s%d, 8" % sW)
        e("v_lshl_add_u32 v%d, v0, 2, s6" % vX0)
        if ldsbase + 2560 * 15 > 65535:
            e("v_add_u32 v%d, 0x%x, v%d" % (vX0 + 1, ldsbase, vX0)); ad = vX0 + 1; lb = 0
        else:
            ad = vX0; lb = ldsbase
        for w in range(16):
            e("ds_read_b32 v%d, v%d offset:%d" % (vAcc + w, ad, lb + 2560 * w))
        e("s_waitcnt lgkmcnt(0)")
        for st in (8, 4, 2, 1):
            for w in range(st):
                e("v_add_f32 v%d, v%d, v%d" % (vAcc + w, vAcc + w, vAcc + w + st))
        e("v_lshlrev_b32 v%d, 2, v0" % vX0)
        e("s_add_u32 s6, s%d, %d" % (sWsOff, part * 8192))
        return "buffer_store_dword v%d, v%d, %s, s6 offen sc1" % (vAcc, vX0, srd(sWS))

    def write_out_partials(ldsbase):
        e("s_mul_i32 s6, s%d, 2560" % sW)
        e("s_add_u32 s6, s6, %d" % ldsbase)
        e("v_add_u32 v%d, s6, v%d" % (vT1, vT0))
        exec_lo32()
        for c in range(5):
            e("ds_write_b128 v%d, %s offset:%d" % (vT1, vr(vAcc + 4 * c), 512 * c))
        exec_all()

    def dn_item(i, c):
        def issue(s):
            if i == 0 and c == 0:
                e("s_lshl_b32 s7, s%d, 2" % sW)
                e("v_add_u32 v%d, s7, v%d" % (vW, vG))
                e("v_mul_u32_u24 v%d, 1152, v%d" % (vW, vW))
                e("v_add_u32 v%d, v%d, v%d" % (vW, vW, vR16))
            return a.vmem("buffer_load_dwordx4 %s, v%d, %s, %s offen offset:%d" % (vr(s), vW, srd(sWD), soff(i * 73728), c * 256))
        def pre():
            if i == 0 and c == 0:
                barrier()
                e("v_lshrrev_b32 v%d, 4, v%d" % (vT1, vR16))
                e("v_min_u32 v%d, 2, v%d" % (vT1, vT1))
                e("v_lshl_add_u32 v%d, v%d, 6, v%d" % (vT1, vT1, vG))
                e("s_lshl_b32 s7, s%d, 2" % sW)
                e("v_add_u32 v%d, s7, v%d" % (vT1, vT1))
                e("v_lshlrev_b32 v%d, 1, v%d" % (vT1, vT1))
                e("ds_read_u16 v%d, v%d offset:%d" % (vXc, vT1, HB))
                e("s_waitcnt lgkmcnt(0)")
                e("v_lshl_or_b32 v%d, v%d, 16, v%d" % (vXc, vXc, vXc))
            if c == 0:
                buildB(i & 1, vXc, i)
        def consume(s):
            mfma(vAcc + 4 * c, i & 1, s, first=(i == 0))
        def post():
            if not (i == 2 and c == 4): return
            write_out_partials(DP)
            barrier()
            L = newlabel("bpub")
            e("s_cmp_ge_u32 s%d, 9" % sW); e("s_cbranch_scc1 %s" % L)
            e(publish(1, DP))
            e("%s:" % L)
        return Item(issue, consume, pre, post)

    vOc = vX0 + 4
    def wo_item(i, c):
        def issue(s):
            if i == 0 and c == 0:
                e("s_lshl_b32 s7, s%d, 3" % sW)
                e("v_add_u32 v%d, s7, v%d" % (vW, vG))
                e("v_mul_u32_u24 v%d, 1152, v%d" % (vW, vW))
                e("v_add_u32 v%d, v%d, v%d" % (vW, vW, vR16))
            return a.vmem("buffer_load_dwordx4 %s, v%d, %s, %s offen offset:%d" % (vr(s), vW, srd(sWO), soff(i * 4608), c * 256))
        def pre():
            if i == 0 and c == 0:
                e("v_add_f32_dpp v%d, v%d, v%d row_ror:4 row_mask:0xf bank_mask:0xf" % (vL, vL, vL))
                e("v_add_f32_dpp v%d, v%d, v%d row_ror:8 row_mask:0xf bank_mask:0xf" % (vL, vL, vL))
                cross_row("v_add_f32", vL)
                e("s_mul_i32 s6, s%d, 528" % sW)
                e("v_add_u32 v%d, s6, v%d" % (vT1, vT0))
                exec_lo32()
                e("ds_write_b128 v%d, %s offset:%d" % (vT1, vr(vO), OP))
                e("s_mov_b32 exec_lo, 1")
                e("s_lshl_b32 s6, s%d, 3" % sW)
                e("v_mov_b32 v%d, s6" % vT1)
                e("v_mov_b32 v%d, v%d" % (vX0, vM)); e("v_mov_b32 v%d, v%d" % (vX0 + 1, vL))
                e("ds_write_b64 v%d, %s offset:%d" % (vT1, vr(vX0, 2), ML))
                exec_all()
                barrier()
                e("v_lshrrev_b32 v%d, 1, v%d" % (vT1, vR16))
                e("ds_read_b64 %s, v%d offset:%d" % (vr(vX0, 2), vT1, ML))
                e("v_lshrrev_b32 v%d, 4, v%d" % (vT1, vR16))
                e("v_mul_u32_u24 v%d, 528, v%d" % (vT1, vT1))
                e("v_lshl_add_u32 v%d, v%d, 2, v%d" % (vT1, vG, vT1))
                e("s_lshl_b32 s6, s%d, 5" % sW)
                e("v_add_u32 v%d, s6, v%d" % (vT1, vT1))
                e("ds_read_b32 v%d, v%d offset:%d" % (vOc, vT1, OP))
                e("ds_read_b32 v%d, v%d offset:%d" % (vOc + 1, vT1, OP + 16))
                e("s_waitcnt lgkmcnt(0)")
                mr, lr, mm = vX0, vX0 + 1, vX0 + 2
                e("v_mov_b32 v%d, v%d" % (mm, mr))
                row_allreduce("v_max_f32", [mm])
                e("v_sub_f32 v%d, v%d, v%d" % (mr, mr, mm))
                e("v_mul_f32 v%d, s%d, v%d" % (mr, sLog2e, mr))
                e("v_exp_f32 v%d, v%d" % (mr, mr))
                for r in (lr, vOc, vOc + 1):
                    e("v_mul_f32 v%d, v%d, v%d" % (r, r, mr))
                row_allreduce("v_add_f32", [lr, vOc, vOc + 1])
                e("v_rcp_f32 v%d, v%d" % (lr, lr))
                for r in (vOc, vOc + 1):
                    e("v_mul_f32 v%d, v%d, v%d" % (r, r, lr))
                if dbg:
                    e("s_lshl_b32 s6, s%d, 5" % sW)
                    e("v_lshl_add_u32 v%d, v%d, 2, s6" % (vT1, vG))
                    e("buffer_store_dword v%d, v%d, %s, s95 offen offset:3072" % (vOc, vT1, srd(sWS)))
                    e("buffer_store_dword v%d, v%d, %s, s95 offen offset:3088" % (vOc + 1, vT1, srd(sWS)))
                    e("s_nop 3")
                for r in (vOc, vOc + 1):
                    e("v_cvt_pk_bf16_f32 v%d, v%d, v%d" % (r, r, r))
                buildB(0, vOc); buildB(1, vOc + 1)
        def consume(s):
            mfma(vAcc + 4 * c, i & 1, s, first=(i == 0))
        return Item(issue, consume, pre, None)

    add_kv(0)
    for j in range(4): stream.append(gv_item(j))
    for i in range(9):
        for which in range(3): stream.append(gu_item(i, which))
    add_kv(1); add_kv(2)
    for i in range(3):
        for c in range(5): stream.append(dn_item(i, c))
    for t in range(3, NB): add_kv(t)
    for i in range(2):
        for c in range(5): stream.append(wo_item(i, c))

    n = len(stream)
    slot = lambda p: RING0 + 4 * (p % R)
    for p in range(R):
        stream[p].op = stream[p].issue(slot(p))
    e("v_and_b32 v%d, 16, v%d" % (vT1, vR16))
    e("v_mov_b32 v%d, 0xffff" % vT0)
    e("v_lshlrev_b32 v%d, v%d, v%d" % (vT0, vT1, vT0))
    e("v_lshrrev_b32 v%d, 5, v%d" % (vT1, vR16))
    for w in range(4):
        e("v_cmp_eq_u32 vcc, %d, v%d" % (w, vT1))
        e("v_cndmask_b32 v%d, 0, v%d, vcc" % (vMask + w, vT0))
    e("s_mul_i32 s%d, s%d, 288" % (sA, sH))
    make_srd(sWG, pWG, sA, 575 * 9216 + 288)
    make_srd(sWU, pWU, sA, 575 * 9216 + 288)
    e("s_mul_i32 s%d, s%d, %d" % (sA, sH, 144 * 1152))
    make_srd(sWD, pWD, sA, 144 * 1152)
    e("s_mul_i32 s%d, s%d, %d" % (sA, sH, 128 * 1152))
    make_srd(sWO, pWO, sA, 128 * 1152)
    make_srd(sGW, pGW, None, 1152)
    make_srd(sWS, pWS, None, (64 << 20) if dbg else 8 * 9 * 2 * 32 * 256)
    if dbg:
        e("s_lshl_b32 s95, s%d, 5" % sBt); e("s_add_u32 s95, s95, s%d" % sH); e("s_lshl_b32 s95, s95, 12"); e("s_add_u32 s95, s95, 0x400000")
    make_srd(sOUT, pOUT, None, 4608 * 2)
    make_srd(sDBG, pDBG, None, 256)
    e("s_mul_i32 s%d, s%d, 9" % (sC, sBt)); e("s_add_u32 s%d, s%d, s%d" % (sC, sC, sW))
    e("s_lshl_b32 s%d, s%d, 6" % (sWsOff, sC)); e("s_add_u32 s%d, s%d, s%d" % (sWsOff, sWsOff, sH))
    e("s_lshl_b32 s%d, s%d, 8" % (sWsOff, sWsOff))
    e("v_mov_b32 v%d, 0xff7fffff" % vM)
    e("v_mov_b32 v%d, 0" % vL)
    for k in range(4): e("v_mov_b32 v%d, 0" % (vO + k))

    pend = []
    for p in range(n):
        it = stream[p]
        if it.pre: it.pre()
        a.wait_vm(it.op)
        if it.consume: it.consume(slot(p))
        pend.append(p)
        if not it.defer:
            for q in pend:
                if q + R < n:
                    stream[q + R].op = stream[q + R].issue(slot(q))
            pend = []
        if it.post: it.post()

    write_out_partials(AP)
    barrier()
    e("s_cmp_ge_u32 s%d, 9" % sW); e("s_cbranch_scc1 L_done")
    e(publish(0, AP))
    e("s_waitcnt vmcnt(0)")
    e("s_lshr_b32 s6, s%d, 1" % sC); e("s_lshl_b32 s6, s6, 2")
    e("s_and_b32 s7, s%d, 1" % sC); e("s_lshl_b32 s7, s7, 4")
    e("s_lshl_b32 s%d, 1, s7" % sA)
    e("v_mov_b32 v%d, s%d" % (vX0, sA)); e("v_mov_b32 v%d, s6" % (vX0 + 1))
    e("s_mov_b32 exec_lo, 1"); e("s_mov_b32 exec_hi, 0")
    e("buffer_atomic_add v%d, v%d, %s, 0 offen sc0" % (vX0, vX0 + 1, srd(sDBG)))
    e("s_waitcnt vmcnt(0)")
    e("v_readfirstlane_b32 s%d, v%d" % (sA, vX0))
    exec_all()
    e("s_lshr_b32 s%d, s%d, s7" % (sA, sA)); e("s_and_b32 s%d, s%d, 0xffff" % (sA, sA))
    e("s_cmp_lg_u32 s%d, 31" % sA); e("s_cbranch_scc1 L_done")
    e("s_lshl_b32 s6, s%d, 14" % sC)
    e("v_lshlrev_b32 v%d, 4, v0" % vX0)
    for part in range(2):
        for i in range(8):
            if i % 4 == 0:
                e("s_add_u32 s7, s6, %d" % (part * 8192 + (i // 4) * 4096))
            e("buffer_load_dwordx4 %s, v%d, %s, s7 offen offset:%d sc1" % (vr(RING0 + 4 * (part * 8 + i)), vX0, srd(sWS), (i % 4) * 1024))
    for part in range(2):
        e("s_waitcnt vmcnt(%d)" % (8 - 8 * part))
        b0 = RING0 + 32 * part
        for st in (4, 2, 1):
            for i in range(st):
                for d in range(4):
                    e("v_add_f32 v%d, v%d, v%d" % (b0 + 4 * i + d, b0 + 4 * i + d, b0 + 4 * (i + st) + d))
        e("v_permlane32_swap_b32 v%d, v%d" % (b0, b0 + 2))
        e("v_permlane32_swap_b32 v%d, v%d" % (b0 + 1, b0 + 3))
        e("v_add_f32 v%d, v%d, v%d" % (b0, b0, b0 + 2))
        e("v_add_f32 v%d, v%d, v%d" % (b0 + 1, b0 + 1, b0 + 3))
        e("v_permlane16_swap_b32 v%d, v%d" % (b0, b0 + 1))
        e("v_add_f32 v%d, v%d, v%d" % (b0, b0, b0 + 1))
    A, Bq = RING0, RING0 + 32
    bf16r2(A, Bq, vX0 + 1)
    e("v_mul_f32 v%d, v%d, v%d" % (A, A, vGate)); e("v_mul_f32 v%d, v%d, v%d" % (Bq, Bq, vOmg))
    bf16r2(A, Bq, vX0 + 1)
    e("v_add_f32 v%d, v%d, v%d" % (A, A, Bq))
    e("v_cvt_pk_bf16_f32 v%d, v%d, v%d" % (A, A, A))
    e("s_mul_i32 s6, s%d, 576" % sBt); e("s_lshl_b32 s7, s%d, 6" % sW); e("s_add_u32 s6, s6, s7")
    e("v_lshrrev_b32 v%d, 2, v%d" % (vX0, vR16))
    e("v_add3_u32 v%d, v%d, v%d, s6" % (vX0, vX0, vG))
    e("v_lshlrev_b32 v%d, 1, v%d" % (vX0, vX0))
    e("buffer_store_short v%d, v%d, %s, 0 offen" % (A, vX0, srd(sOUT)))
    e("L_done:")
    e("s_endpgm")

    body = a.finish()
    nv = RING0 + 4 * R
    assert nv <= 128 and 16 <= R
    out = [HDR.rstrip(), "; @launch grid=(256,1,1) block=(1024,1,1) lds=%d" % LDS_BYTES,
           '.amdgcn_target "amdgcn-amd-amdhsa--gfx950"', ".text", ".globl %s" % KN, ".p2align 8",
           ".type %s,@function" % KN, "%s:" % KN] + body + [
           '.section .rodata,"a"', ".p2align 6", ".amdhsa_kernel %s" % KN,
           "  .amdhsa_next_free_vgpr 128", "  .amdhsa_next_free_sgpr 102", "  .amdhsa_accum_offset 128",
           "  .amdhsa_group_segment_fixed_size 0", "  .amdhsa_kernarg_size 104", "  .amdhsa_user_sgpr_count 2",
           "  .amdhsa_user_sgpr_kernarg_segment_ptr 1", "  .amdhsa_system_sgpr_workgroup_id_x 1", ".end_amdhsa_kernel"]
    return "\n".join(out) + "\n"

if __name__ == "__main__":
    dst = sys.argv[1] if len(sys.argv) > 1 else "gated_mix__mha_block_cached__glu_gated_geglu__decode.s"
    kw = {}
    for x in sys.argv[2:]:
        k, v = x.split("=")
        kw[k] = int(v)
    open(dst, "w").write(gen(**kw))
    print("wrote", dst, "LDS", LDS_BYTES)
```

```python
import sys, struct
from asmlib import Asm
REF = open("gated_mix__mha_block_cached__glu_gated_geglu__decode.s.ref").read()
HDR = REF.split("; Override launch")[0]
KN = "gated_mix__mha_block_cached__glu_gated_geglu__decode_kernel"

def f32(x):
    return "0x%08x" % struct.unpack("<I", struct.pack("<f", x))[0]

vLane, vKV, vR16, vG = 0, 1, 2, 3
vMask = 4
vQ = 8
vXc, vM, vL, vTk, vSt, vW, vT0, vT1 = 12, 13, 14, 15, 16, 17, 18, 19
vO = 20
vB = 24
vAcc = 32
vS = 32; vT = 40; vU = 44; vN, vAl = 46, 47
vX0 = 48
SLOT16 = 56
vZ, vOne = 60, 61
RING0 = 64
sW, sBt, sH = 3, 4, 5
sK, sV, sWQ, sXA, sWU_, sWD, sWO = 8, 12, 16, 20, 24, 28, 32
pX, pK, pV, pWQ, pWO, pBX, pWG, pWU, pWD, pGW, pOUT, pDBG, pWS = 36, 38, 40, 42, 44, 46, 48, 50, 52, 54, 56, 58, 60
sX, sGW, sWS, sOUT, sDBG = 64, 68, 72, 76, 80
sKV, sOff, sTmp, sOff2 = 84, 85, 86, 87
sR = 88
sA, sB2, sC, sNxt = 92, 93, 94, 95
sScale, sLog2e = 96, 97
sWsOff = 98
sHi = 99
sIt, sJ = 62, 63
QP = 0
QB = 8192
TK = QB + 512
GT = TK + 16
C1 = TK + 32
C2 = TK + 36
C3 = TK + 40
C5 = TK + 44
C6 = TK + 48
C7 = TK + 52
HB = TK + 64
OP = HB + 1024
FP = OP + 16 * 528
QB2 = FP + 4 * 528
XS = QB2 + 256
AP = XS + 9216
GP = AP + 8 * 2560
LDS_USED = GP + 12 * 4096
LDS_BYTES = 104 * 1024
NS = 4
NBLK = 128
NU = 72
WS_A = 0
WS_B = 8 * 9 * 32 * 256
WS_C = WS_B + 8 * 9 * NU * 256
WS_SIZE = WS_C + NU * 8192
QCNT = 164
INV = 256
sCB, sKVb, sSeq, sLimO, sFb, sCurF, sItc, sNth = 24, 25, 26, 27, 40, 41, 42, 43
vSave = 96
FCNT = 160

def srd(x):
    return "s[%d:%d]" % (x, x + 3)
def vr(x, n=4):
    return "v[%d:%d]" % (x, x + n - 1)

def gen(stamps=False, wnt=0, prio=0, sprio=3, ring=8, fake=0, fnt=1, itsw=10, nos=8):
    FF = ' nt' if fnt else ''
    WF = " nt" if wnt else ""
    a = Asm(); e = a.e
    slot = lambda i: RING0 + 4 * i
    def make_srd(d, p, off_sgpr, size):
        if off_sgpr is None:
            e("s_mov_b32 s%d, s%d" % (d, p)); e("s_and_b32 s%d, s%d, 0xffff" % (d + 1, p + 1))
        else:
            e("s_add_u32 s%d, s%d, s%d" % (d, p, off_sgpr)); e("s_addc_u32 s%d, s%d, 0" % (d + 1, p + 1))
            e("s_and_b32 s%d, s%d, 0xffff" % (d + 1, d + 1))
        e("s_mov_b32 s%d, 0x%x" % (d + 2, size)); e("s_mov_b32 s%d, 0x20000" % (d + 3))
    def exec_lo32():
        e("s_mov_b32 exec_lo, -1"); e("s_mov_b32 exec_hi, 0")
    def exec_one(): e("s_mov_b64 exec, 1")
    def exec_all(): e("s_mov_b64 exec, -1")
    def bf16r2(x, y, t):
        e("v_cvt_pk_bf16_f32 v%d, v%d, v%d" % (t, x, y))
        e("v_lshlrev_b32 v%d, 16, v%d" % (x, t))
        e("v_and_b32 v%d, s%d, v%d" % (y, sHi, t))
    def bf16r(x):
        e("v_cvt_pk_bf16_f32 v%d, v%d, v%d" % (x, x, x))
        e("v_lshlrev_b32 v%d, 16, v%d" % (x, x))
    def row_allreduce(op, regs):
        for sh in (1, 2, 4, 8):
            for r in regs:
                e("%s_dpp v%d, v%d, v%d row_ror:%d row_mask:0xf bank_mask:0xf" % (op, r, r, r, sh))
    def quad_allreduce(op, regs):
        for qp in ("[1,0,3,2]", "[2,3,0,1]"):
            for r in regs:
                e("%s_dpp v%d, v%d, v%d quad_perm:%s row_mask:0xf bank_mask:0xf" % (op, r, r, r, qp))
    def cross_row(op, x, init=None):
        for k in range(4):
            e("v_readlane_b32 s%d, v%d, %d" % (sR + k, x, 16 * k))
        if init is None: e("v_mov_b32 v%d, s%d" % (x, sR))
        else: e("%s v%d, s%d, v%d" % (op, x, sR, init))
        for k in (1, 2, 3):
            e("%s v%d, s%d, v%d" % (op, x, sR + k, x))
    def buildB(bset, coef, lane=None):
        for w in range(4):
            if lane is None:
                e("v_and_b32 v%d, v%d, v%d" % (vB + 4 * bset + w, coef, vMask + w))
            else:
                e("v_and_b32_dpp v%d, v%d, v%d row_newbcast:%d row_mask:0xf bank_mask:0xf" % (vB + 4 * bset + w, coef, vMask + w, lane))
    def buildB2(bset, c0, c1, lane):
        for w in range(4):
            e("v_and_b32_dpp v%d, v%d, v%d row_newbcast:%d row_mask:0xf bank_mask:0x3" % (vB + 4 * bset + w, c0, vMask + w, lane))
            e("v_and_b32_dpp v%d, v%d, v%d row_newbcast:%d row_mask:0xf bank_mask:0xc" % (vB + 4 * bset + w, c1, vMask + w, lane))
    def mfma(acc, bset, s, first=False):
        e("v_mfma_f32_16x16x32_bf16 %s, %s, %s, %s" % (vr(acc), vr(vB + 4 * bset), vr(s), "0" if first else vr(acc)))
    def barrier():
        e("s_waitcnt lgkmcnt(0)"); e("s_barrier")
    nst = [0]
    def stamp(k=None):
        if not stamps: return
        if k is None:
            k = nst[0]; nst[0] += 1
        e("s_memrealtime s[100:101]")
        e("s_waitcnt lgkmcnt(0)")
        e("v_writelane_b32 v%d, s100, %d" % (vSt, k))
    def kv_load(m, i, s):
        e("buffer_load_dwordx4 %s, v%d, %s, s%d offen offset:%d nt" % (vr(s), vKV, srd(sK if m == 0 else sV), sOff if i < 4 else sOff2, (i % 4) * 1024))
    def set_off(sblk, own_only=False):
        e("s_and_b32 s%d, s%d, 127" % (sOff, sblk))
        e("s_lshl_b32 s%d, s%d, 13" % (sOff, sOff))
        if own_only:
            e("s_add_u32 s%d, s%d, s%d" % (sOff, sOff, sKV))
        else:
            e("s_cmp_ge_u32 s%d, 128" % sblk)
            e("s_cselect_b32 s%d, s%d, s%d" % (sOff2, sKVb, sKV))
            e("s_add_u32 s%d, s%d, s%d" % (sOff, sOff, sOff2))
        e("s_cmp_ge_u32 s%d, %d" % (sblk, INV))
        e("s_cselect_b32 s%d, 0xf0000000, s%d" % (sOff, sOff))
        e("s_add_u32 s%d, s%d, 4096" % (sOff2, sOff))
    def lds_signal(off):
        e("s_waitcnt lgkmcnt(0)")
        exec_one()
        e("ds_add_u32 v%d, v%d offset:%d" % (vZ, vOne, off))
        exec_all()
    def lds_spin(off, target, name):
        e("%s:" % name)
        e("ds_read_b32 v%d, v%d offset:%d" % (vTk, vZ, off))
        e("s_waitcnt lgkmcnt(0)")
        e("v_readfirstlane_b32 s7, v%d" % vTk)
        e("s_nop 3")
        e("s_cmp_ge_u32 s7, %d" % target)
        e("s_cbranch_scc1 %s_ok" % name)
        e("s_sleep %d" % (40 if name.startswith("L_late") else 3))
        e("s_branch %s" % name)
        e("%s_ok:" % name)

    e("s_cmp_ge_u32 s2, 256"); e("s_cbranch_scc1 L_done")
    e("s_load_dwordx16 s[36:51], s[0:1], 0")
    e("s_load_dwordx8 s[52:59], s[0:1], 64")
    e("s_load_dwordx2 s[60:61], s[0:1], 96")
    e("v_lshrrev_b32 v%d, 6, v0" % vW)
    e("v_and_b32 v0, 63, v0")
    e("v_readfirstlane_b32 s%d, v%d" % (sW, vW))
    e("s_and_b32 s6, s2, 7"); e("s_lshr_b32 s7, s2, 3"); e("s_and_b32 s%d, s7, 3" % sH)
    e("s_lshl_b32 s6, s6, 2"); e("s_add_u32 s%d, s%d, s6" % (sH, sH)); e("s_lshr_b32 s%d, s7, 2" % sBt)
    e("s_mov_b32 s%d, %s" % (sScale, f32(128 ** -0.5)))
    e("s_mov_b32 s%d, %s" % (sLog2e, f32(1.4426950408889634)))
    e("s_mov_b32 s%d, 0xffff0000" % sHi)
    if stamps: e("v_mov_b32 v%d, 0" % vSt)
    e("v_and_b32 v%d, 15, v0" % vT0)
    e("v_lshrrev_b32 v%d, 4, v0" % vG)
    e("v_lshlrev_b32 v%d, 4, v%d" % (vR16, vT0))
    e("v_lshlrev_b32 v%d, 4, v0" % vKV)
    e("s_mul_i32 s7, s%d, 36" % sW)
    e("v_min_u32 v%d, 8, v%d" % (vT1, vT0))
    e("v_lshl_add_u32 v%d, v%d, 2, v%d" % (vT1, vT1, vG))
    e("v_add_u32 v%d, s7, v%d" % (vT1, vT1))
    e("v_lshlrev_b32 v%d, 1, v%d" % (vT1, vT1))
    e("v_add_u32 v%d, s7, v%d" % (vW, vG))
    e("v_lshlrev_b32 v%d, 13, v%d" % (vW, vW))
    e("v_add_u32 v%d, v%d, v%d" % (vW, vW, vR16))
    e("s_lshl_b32 s%d, s%d, 5" % (sKV, sBt)); e("s_add_u32 s%d, s%d, s%d" % (sKV, sKV, sH)); e("s_lshl_b32 s%d, s%d, 20" % (sKV, sKV))
    e("s_mul_i32 s%d, s%d, 1152" % (sA, sBt))
    e("s_lshl_b32 s%d, s%d, 8" % (sB2, sH))
    e("s_sub_u32 s6, s%d, 5" % sW)
    e("s_cmp_ge_u32 s2, %d" % NU); e("s_cselect_b32 s7, %d, 0" % nos)
    e("s_add_u32 s%d, s6, 4" % sNxt)
    e("s_cmp_lt_u32 s6, s7"); e("s_cselect_b32 s%d, s%d, %d" % (sNxt, sNxt, INV)); e("s_cselect_b32 s62, 1, 0")
    e("s_cmp_lt_u32 s%d, %d" % (sW, NS)); e("s_cselect_b32 s%d, s%d, s%d" % (sNxt, sW, sNxt))
    set_off(sNxt, own_only=True)
    e("s_waitcnt lgkmcnt(0)")
    stamp()
    make_srd(sX, pX, sA, 1152)
    opx = a.vmem("buffer_load_ushort v%d, v%d, %s, 0 offen" % (vXc, vT1, srd(sX)))
    make_srd(sWQ, pWQ, sB2, 575 * 8192 + 256)
    make_srd(sK, pK, None, 0x10000000)
    make_srd(sV, pV, None, 0x10000000)
    wqs = [slot(8 + i) for i in range(8)] + [SLOT16]
    wqop = []
    for i in range(9):
        if i: e("s_mov_b32 s%d, 0x%x" % (sTmp, i * 32768))
        wqop.append(a.vmem(("buffer_load_dwordx4 %s, v%d, %s, %s offen" + WF) % (vr(wqs[i]), vW, srd(sWQ), ("s%d" % sTmp) if i else "0")))
    make_srd(sXA, pX, None, 9216)
    e("s_sub_u32 s6, s%d, 4" % sW); e("s_lshl_b32 s6, s6, 10")
    e("s_cmp_ge_u32 s2, %d" % NU); e("s_cselect_b32 s%d, 0x70000000, s6" % sTmp)
    opxs = a.vmem("buffer_load_dwordx4 %s, v%d, %s, s%d offen" % (vr(vX0 + 4), vKV, srd(sXA), sTmp))
    e("v_and_b32 v%d, 16, v%d" % (vT1, vR16))
    e("v_mov_b32 v%d, 0xffff" % vT0)
    e("v_lshlrev_b32 v%d, v%d, v%d" % (vT0, vT1, vT0))
    e("v_bfe_u32 v%d, v%d, 5, 2" % (vT1, vR16))
    for w in range(4):
        e("v_cmp_eq_u32 vcc, %d, v%d" % (w, vT1))
        e("v_cndmask_b32 v%d, 0, v%d, vcc" % (vMask + w, vT0))
    e("s_mul_i32 s%d, s2, %d" % (sA, 64 * 1152))
    e("s_cmp_ge_u32 s2, %d" % NU); e("s_cselect_b32 s%d, 0, s%d" % (sA, sA))
    make_srd(sWD, pWD, sA, 64 * 1152)
    e("s_mul_i32 s%d, s%d, %d" % (sA, sH, 128 * 1152))
    make_srd(sWO, pWO, sA, 128 * 1152)
    make_srd(sGW, pGW, None, 1152)
    make_srd(sWS, pWS, None, (64 << 20) if stamps else WS_SIZE)
    make_srd(sOUT, pOUT, None, 4608 * 2)
    make_srd(sDBG, pDBG, None, 256)
    e("s_mul_i32 s%d, s%d, 9" % (sC, sBt)); e("s_add_u32 s%d, s%d, s%d" % (sC, sC, sW))
    e("s_lshl_b32 s%d, s%d, 5" % (sWsOff, sC)); e("s_add_u32 s%d, s%d, s%d" % (sWsOff, sWsOff, sH))
    e("s_lshl_b32 s%d, s%d, 8" % (sWsOff, sWsOff))
    e("s_cmp_lt_u32 s2, 40"); e("s_cselect_b32 s%d, 3, 2" % sNth)
    e("s_cmp_lt_u32 s2, %d" % NU); e("s_cselect_b32 s%d, s%d, 0" % (sNth, sNth))
    e("s_lshl_b32 s6, s%d, 2" % sNth); e("s_sub_u32 s%d, 128, s6" % sLimO)
    e("s_sub_u32 s6, s2, %d" % NU)
    e("s_cmp_ge_u32 s6, 144"); e("s_cselect_b32 s7, 2, 1"); e("s_cmp_lt_u32 s6, 72"); e("s_cselect_b32 s7, 0, s7")
    e("s_mul_i32 s%d, s7, 72" % sA); e("s_sub_u32 s6, s6, s%d" % sA)
    e("s_cmp_lt_u32 s2, %d" % NU); e("s_cselect_b32 s6, s2, s6")
    e("s_lshl_b32 s%d, s6, 13" % sCB); e("s_add_u32 s%d, s%d, %d" % (sCB, sCB, WS_C))
    e("s_lshl_b32 s%d, s7, 2" % sFb); e("s_sub_u32 s%d, %d, s%d" % (sFb, 128 + 124, sFb)); e("s_add_u32 s%d, s%d, s%d" % (sFb, sFb, sW))
    e("s_mul_i32 s%d, s7, 2112" % sB2)
    e("s_and_b32 s%d, s6, 7" % sA); e("s_lshl_b32 s%d, s%d, 2" % (sA, sA)); e("s_lshr_b32 s7, s6, 3")
    e("s_and_b32 s%d, s7, 3" % sKVb); e("s_add_u32 s%d, s%d, s%d" % (sKVb, sKVb, sA))
    e("s_lshr_b32 s7, s7, 2"); e("s_lshl_b32 s7, s7, 5"); e("s_add_u32 s%d, s%d, s7" % (sKVb, sKVb)); e("s_lshl_b32 s%d, s%d, 20" % (sKVb, sKVb))
    e("s_cmp_ge_u32 s2, %d" % NU); e("s_cselect_b32 s7, %d, 4" % (nos + 4)); e("s_add_u32 s%d, s%d, s7" % (sSeq, sW)); e("s_mov_b32 s%d, 0" % sCurF)
    e("s_cmp_eq_u32 s62, 1"); e("s_cselect_b32 s%d, 128, s%d" % (sSeq, sSeq))
    e("s_cmp_lt_u32 s2, %d" % NU); e("s_cselect_b32 s%d, 1000, %d" % (sItc, itsw))
    e("s_cmp_eq_u32 s62, 1"); e("s_cselect_b32 s%d, 1000, s%d" % (sItc, sItc))
    e("v_mov_b32 v%d, 0xff7fffff" % vM)
    e("v_mov_b32 v%d, 0" % vL)
    for k in range(4): e("v_mov_b32 v%d, 0" % (vO + k))
    e("v_mov_b32 v%d, 0" % vZ); e("v_mov_b32 v%d, 1" % vOne)
    e("v_lshlrev_b32 v%d, 1, v%d" % (vT0, vR16))
    e("v_lshl_add_u32 v%d, v%d, 4, v%d" % (vT0, vG, vT0))
    e("ds_write_b32 v%d, v%d offset:%d" % (vZ, vZ, C1))
    e("ds_write_b32 v%d, v%d offset:%d" % (vZ, vZ, C2))
    e("ds_write_b32 v%d, v%d offset:%d" % (vZ, vZ, C3))
    e("ds_write_b32 v%d, v%d offset:%d" % (vZ, vZ, C5))
    e("ds_write_b32 v%d, v%d offset:%d" % (vZ, vZ, C6))
    e("ds_write_b32 v%d, v%d offset:%d" % (vZ, vZ, C7))
    e("s_cmp_lt_u32 s%d, 4" % sW); e("s_cbranch_scc1 L_noinit")
    e("s_mul_i32 s6, s%d, 528" % sW)
    e("v_add_u32 v%d, s6, v%d" % (vT1, vT0))
    exec_lo32()
    e("ds_write_b128 v%d, %s offset:%d" % (vT1, vr(vO), OP))
    e("s_mov_b32 exec_lo, 1")
    e("v_mov_b32 v%d, s6" % vT1)
    e("v_mov_b32 v%d, v%d" % (vX0, vM)); e("v_mov_b32 v%d, 0" % (vX0 + 1))
    e("ds_write_b64 v%d, %s offset:%d" % (vT1, vr(vX0, 2), OP + 512))
    e("s_cmp_lg_u32 s%d, 15" % sW); e("s_cbranch_scc1 L_noinit2")
    e("s_cmp_ge_u32 s2, %d" % NU); e("s_cbranch_scc1 L_noinit2")
    e("buffer_store_dword v%d, v%d, %s, s%d offen sc1" % (vZ, vZ, srd(sWS), sCB))
    e("L_noinit2:")
    exec_all()
    e("L_noinit:")
    a.wait_vm(opx)
    for i in range(8):
        kv_load(0, i, slot(i)); a.vm.append(len(a.vm))
    e("v_lshl_or_b32 v%d, v%d, 16, v%d" % (vXc, vXc, vXc))
    for i in range(9):
        buildB(i & 1, vXc, i)
        a.wait_vm(wqop[i])
        mfma(vAcc, i & 1, wqs[i], first=(i == 0))
        if i < 8 and ring == 16:
            kv_load(1, i, slot(8 + i)); a.vm.append(len(a.vm))
    e("s_lshl_b32 s6, s%d, 9" % sW)
    e("v_add_u32 v%d, s6, v%d" % (vT1, vT0))
    exec_lo32()
    e("ds_write_b128 v%d, %s offset:%d" % (vT1, vr(vAcc), QP))
    exec_all()
    e("s_sub_u32 s6, s%d, 4" % sW)
    e("s_cmp_ge_u32 s6, 9"); e("s_cbranch_scc1 L_noxs")
    a.wait_vm(opxs)
    e("s_lshl_b32 s6, s6, 10")
    e("v_add_u32 v%d, s6, v%d" % (vT1, vKV))
    e("ds_write_b128 v%d, %s offset:%d" % (vT1, vr(vX0 + 4), XS))
    e("L_noxs:")
    barrier()
    e("s_cmp_ge_u32 s%d, 2" % sW); e("s_cbranch_scc1 L_qred")
    e("s_lshl_b32 s6, s%d, 6" % sW)
    e("v_add_u32 v%d, s6, v0" % vT1)
    e("v_lshlrev_b32 v%d, 2, v%d" % (vX0, vT1))
    for w in range(16):
        e("ds_read_b32 v%d, v%d offset:%d" % (vAcc + w, vX0, QP + 512 * w))
    e("s_waitcnt lgkmcnt(0)")
    for st in (8, 4, 2, 1):
        for w in range(st):
            e("v_add_f32 v%d, v%d, v%d" % (vAcc + w, vAcc + w, vAcc + w + st))
    e("v_cvt_pk_bf16_f32 v%d, v%d, v%d" % (vAcc, vAcc, vAcc))
    e("v_lshlrev_b32 v%d, 1, v%d" % (vT1, vT1))
    e("ds_write_b16 v%d, v%d offset:%d" % (vT1, vAcc, QB))
    e("L_qred:")
    barrier()
    e("s_cmp_eq_u32 s62, 1"); e("s_cbranch_scc1 L_goloop")
    e("s_cmp_ge_u32 s%d, %d" % (sW, NS)); e("s_cbranch_scc1 L_other")
    e("L_goloop:")
    e("ds_read_b128 %s, v%d offset:%d" % (vr(vQ), vR16, QB))
    e("s_setprio %d" % sprio)
    e("s_waitcnt lgkmcnt(0)")
    stamp()

    BANK_OF = {0: 0, 1: 2, 2: 1, 3: 3}
    e("L_loop:")
    e("s_sub_u32 s%d, s%d, 1" % (sItc, sItc))
    e("s_cmp_lt_u32 s%d, s%d" % (sSeq, sLimO)); e("s_cselect_b32 s%d, s%d, %d" % (sNxt, sSeq, INV))
    e("s_cmp_eq_u32 s%d, 0" % sItc); e("s_cselect_b32 s%d, s%d, s%d" % (sNxt, sFb, sNxt))
    e("s_cselect_b32 s6, 0, 4"); e("s_add_u32 s%d, s%d, s6" % (sSeq, sSeq))
    for i in range(8):
        e("s_waitcnt vmcnt(%d)" % (ring - 1))
        s = slot(i)
        e("v_dot2_f32_bf16 v%d, v%d, v%d, 0" % (vS + i, s, vQ))
        for d in (1, 2, 3):
            e("v_dot2_f32_bf16 v%d, v%d, v%d, v%d" % (vS + i, s + d, vQ + d, vS + i))
        kv_load(0 if ring == 16 else 1, i, s)
    if ring == 8: set_off(sNxt)
    for half in (0, 1):
        s0 = vS + 4 * half; t0 = vT + 2 * half
        e("v_add_f32_dpp v%d, v%d, v%d row_ror:8 row_mask:0xf bank_mask:0x3" % (t0, s0, s0))
        e("v_add_f32_dpp v%d, v%d, v%d row_ror:8 row_mask:0xf bank_mask:0xc" % (t0, s0 + 1, s0 + 1))
        e("v_add_f32_dpp v%d, v%d, v%d row_ror:8 row_mask:0xf bank_mask:0x3" % (t0 + 1, s0 + 2, s0 + 2))
        e("v_add_f32_dpp v%d, v%d, v%d row_ror:8 row_mask:0xf bank_mask:0xc" % (t0 + 1, s0 + 3, s0 + 3))
    for half in (0, 1):
        t0 = vT + 2 * half
        e("v_add_f32_dpp v%d, v%d, v%d row_half_mirror row_mask:0xf bank_mask:0x5" % (vU + half, t0, t0))
        e("v_add_f32_dpp v%d, v%d, v%d row_half_mirror row_mask:0xf bank_mask:0xa" % (vU + half, t0 + 1, t0 + 1))
    for qp in ("[1,0,3,2]", "[2,3,0,1]"):
        for half in (0, 1):
            e("v_add_f32_dpp v%d, v%d, v%d quad_perm:%s row_mask:0xf bank_mask:0xf" % (vU + half, vU + half, vU + half, qp))
    bf16r2(vU, vU + 1, vT)
    e("v_mul_f32 v%d, s%d, v%d" % (vU, sScale, vU)); e("v_mul_f32 v%d, s%d, v%d" % (vU + 1, sScale, vU + 1))
    bf16r2(vU, vU + 1, vT)
    e("v_max_f32 v%d, v%d, v%d" % (vN, vU, vU + 1))
    e("v_max_f32_dpp v%d, v%d, v%d row_ror:4 row_mask:0xf bank_mask:0xf" % (vN, vN, vN))
    e("v_max_f32_dpp v%d, v%d, v%d row_ror:8 row_mask:0xf bank_mask:0xf" % (vN, vN, vN))
    cross_row("v_max_f32", vN, init=vM)
    e("v_sub_f32 v%d, v%d, v%d" % (vAl, vM, vN))
    e("v_sub_f32 v%d, v%d, v%d" % (vU, vU, vN))
    e("v_sub_f32 v%d, v%d, v%d" % (vU + 1, vU + 1, vN))
    for r in (vAl, vU, vU + 1): e("v_mul_f32 v%d, s%d, v%d" % (r, sLog2e, r))
    for r in (vAl, vU, vU + 1): e("v_exp_f32 v%d, v%d" % (r, r))
    e("v_mov_b32 v%d, v%d" % (vM, vN))
    e("v_fma_f32 v%d, v%d, v%d, v%d" % (vL, vL, vAl, vU))
    e("v_add_f32 v%d, v%d, v%d" % (vL, vL, vU + 1))
    for k in range(4): e("v_mul_f32 v%d, v%d, v%d" % (vO + k, vO + k, vAl))
    e("v_cvt_pk_bf16_f32 v%d, v%d, v%d" % (vU, vU, vU))
    e("v_cvt_pk_bf16_f32 v%d, v%d, v%d" % (vU + 1, vU + 1, vU + 1))
    for i in range(8):
        buildB(i & 1, vU + (i >> 2), 4 * BANK_OF[i & 3])
        e("s_waitcnt vmcnt(%d)" % (ring - 1))
        sv = slot(8 + i) if ring == 16 else slot(i)
        mfma(vO, i & 1, sv)
        kv_load(1 if ring == 16 else 0, i, sv)
    e("s_add_u32 s6, s%d, 16" % sSeq); e("s_cmp_eq_u32 s6, s%d" % sLimO); e("s_cbranch_scc0 L_nosig")
    exec_one()
    e("ds_write_b32 v%d, v%d offset:%d" % (vZ, vOne, C3))
    exec_all()
    e("L_nosig:")
    e("s_cmp_eq_u32 s%d, 4" % sItc); e("s_cbranch_scc0 L_nosig2")
    exec_one()
    e("ds_write_b32 v%d, v%d offset:%d" % (vZ, vOne, C6))
    exec_all()
    e("L_nosig2:")
    e("s_cmp_eq_u32 s%d, 1" % sCurF); e("s_cbranch_scc1 L_fin")
    e("L_back:")
    e("s_cmp_ge_u32 s%d, %d" % (sNxt, INV)); e("s_cbranch_scc1 L_fin")
    e("s_cmp_lt_u32 s%d, 128" % sNxt); e("s_cbranch_scc1 L_loop")
    e("s_nop 7")
    for k in range(4): e("v_mov_b32 v%d, v%d" % (vSave + k, vO + k))
    for k in range(4): e("v_mov_b32 v%d, v%d" % (vSave + 4 + k, vQ + k))
    e("v_mov_b32 v%d, v%d" % (vSave + 8, vM)); e("v_mov_b32 v%d, v%d" % (vSave + 9, vL))
    lds_spin(C7, 1, "L_q2")
    e("ds_read_b128 %s, v%d offset:%d" % (vr(vQ), vR16, QB2))
    e("v_mov_b32 v%d, 0xff7fffff" % vM); e("v_mov_b32 v%d, 0" % vL)
    for k in range(4): e("v_mov_b32 v%d, 0" % (vO + k))
    e("s_mov_b32 s%d, 1" % sCurF)
    e("s_waitcnt lgkmcnt(0)")
    e("s_branch L_loop")

    e("L_other:")
    e("s_cmp_ge_u32 s2, %d" % NU); e("s_cbranch_scc1 L_wait")
    e("s_cmp_lg_u32 s%d, 15" % sW); e("s_cbranch_scc1 L_noq")
    e("v_lshlrev_b32 v%d, 2, v0" % vT1)
    e("ds_read_b32 v%d, v%d offset:%d" % (vTk, vT1, QB))
    e("s_waitcnt lgkmcnt(0)")
    e("buffer_store_dword v%d, v%d, %s, s%d offen offset:256 sc1" % (vTk, vT1, srd(sWS), sCB))
    e("v_mov_b32 v%d, %d" % (vT1, QCNT))
    e("s_waitcnt vmcnt(0)")
    exec_one()
    e("buffer_atomic_add v%d, v%d, %s, 0 offen" % (vOne, vT1, srd(sDBG)))
    exec_all()
    e("L_noq:")
    e("s_setprio %d" % prio)
    e("s_sub_u32 s%d, s%d, 4" % (sJ, sW))
    vXB = 40
    FA = 48
    vXB = 32; FA = 40; vAd = 56
    e("s_mul_i32 s6, s%d, 48" % sJ)
    e("v_add_u32 v%d, s6, v%d" % (vT1, vG))
    e("v_mul_u32_u24 v%d, %d, v%d" % (vT1, 128 if fake else 9216, vT1))
    e("v_and_b32 v58, 0x70, v%d" % vR16)
    e("s_mul_i32 s6, s2, 73728" if fake else "s_lshl_b32 s6, s2, 7")
    e("v_add3_u32 v%d, v%d, v58, s6" % (vT1, vT1))
    e("v_cmp_gt_u32 vcc, 128, v%d" % vR16)
    e("v_mov_b32 v58, s%d" % pWU); e("v_mov_b32 v59, s%d" % pWG)
    e("v_cndmask_b32 v%d, v58, v59, vcc" % vAd)
    e("v_mov_b32 v58, s%d" % (pWU + 1)); e("v_mov_b32 v59, s%d" % (pWG + 1))
    e("v_cndmask_b32 v%d, v58, v59, vcc" % (vAd + 1))
    e("v_add_co_u32 v%d, vcc, v%d, v%d" % (vAd, vAd, vT1))
    e("s_nop 1")
    e("v_addc_co_u32 v%d, vcc, 0, v%d, vcc" % (vAd + 1, vAd + 1))
    e("s_waitcnt vmcnt(0)")
    for i in range(12):
        e(("global_load_dwordx4 %s, %s, off" + FF) % (vr(slot(i)), vr(vAd, 2)))
        if i < 11:
            e("v_add_co_u32 v%d, vcc, %s, v%d" % (vAd, "0x200" if fake else "0x9000", vAd))
            e("s_nop 1")
            e("v_addc_co_u32 v%d, vcc, 0, v%d, vcc" % (vAd + 1, vAd + 1))
    e("v_lshrrev_b32 v%d, 4, v%d" % (vT1, vR16))
    e("v_min_u32 v%d, 11, v%d" % (vT1, vT1))
    e("v_lshl_add_u32 v%d, v%d, 2, v%d" % (vT1, vT1, vG))
    e("s_mul_i32 s6, s%d, 48" % sJ)
    e("v_add_u32 v%d, s6, v%d" % (vT1, vT1))
    e("v_lshlrev_b32 v%d, 1, v%d" % (vT1, vT1))
    for b in range(8):
        e("ds_read_u16 v%d, v%d offset:%d" % (vXB + b, vT1, XS + 1152 * b))
    e("s_waitcnt lgkmcnt(0)")
    for b in range(8):
        e("v_lshl_or_b32 v%d, v%d, 16, v%d" % (vXB + b, vXB + b, vXB + b))
    e("v_mul_u32_u24 v%d, 1152, v%d" % (vW, vG))
    e("s_lshl_b32 s6, s%d, 8" % sJ)
    e("v_add3_u32 v%d, v%d, v%d, s6" % (vW, vW, vR16))
    for i in range(12):
        e("s_waitcnt vmcnt(%d)" % (11 - i))
        for p in range(4):
            buildB2(p & 1, vXB + 2 * p, vXB + 2 * p + 1, i)
            mfma(FA + 4 * p, p & 1, slot(i), first=(i == 0))
    e("s_cmp_ge_u32 s%d, 5" % sJ); e("s_cbranch_scc1 L_nodn")
    for i in range(16):
        if i: e("s_mov_b32 s%d, %d" % (sTmp, 4608 * i))
        e(("buffer_load_dwordx4 %s, v%d, %s, %s offen" + FF) % (vr(slot(i)), vW, srd(sWD), ("s%d" % sTmp) if i else "0"))
    e("L_nodn:")
    e("s_lshl_b32 s6, s%d, 12" % sJ)
    e("v_add_u32 v%d, s6, v%d" % (vT1, vKV))
    for p in range(4):
        e("ds_write_b128 v%d, %s offset:%d" % (vT1, vr(FA + 4 * p), GP + 1024 * p))
    lds_signal(C1)
    e("s_cmp_ge_u32 s%d, 8" % sJ); e("s_cbranch_scc1 L_ffn_end")
    lds_spin(C1, 12, "L_spin1")
    e("s_lshr_b32 s6, s%d, 1" % sJ); e("s_lshl_b32 s6, s6, 10")
    e("s_and_b32 s7, s%d, 1" % sJ); e("s_lshl_b32 s7, s7, 9"); e("s_add_u32 s6, s6, s7")
    e("v_bfe_u32 v%d, v0, 2, 1" % vT1)
    e("v_lshlrev_b32 v%d, 8, v%d" % (vT1, vT1))
    e("v_lshrrev_b32 v58, 3, v0")
    e("v_lshl_add_u32 v%d, v58, 4, v%d" % (vT1, vT1))
    e("v_and_b32 v58, 3, v0")
    e("v_lshl_add_u32 v%d, v58, 2, v%d" % (vT1, vT1))
    e("v_add_u32 v%d, s6, v%d" % (vT1, vT1))
    e("v_add_u32 v%d, 0x%x, v%d" % (vT1, GP, vT1))
    for m in range(2):
        for w in range(12):
            e("ds_read_b32 v%d, v%d offset:%d" % (32 + 12 * m + w, vT1, 4096 * w + 128 * m))
    e("s_waitcnt lgkmcnt(0)")
    for m in range(2):
        b0 = 32 + 12 * m
        for w in range(4): e("v_add_f32 v%d, v%d, v%d" % (b0 + w, b0 + w, b0 + 8 + w))
        for st in (4, 2, 1):
            for w in range(st): e("v_add_f32 v%d, v%d, v%d" % (b0 + w, b0 + w, b0 + w + st))
    g, u, y, t = 32, 44, 33, 34
    bf16r2(g, u, t)
    c0 = 0.7978845608028654; c1 = c0 * 0.044715
    e("s_mov_b32 s6, %s" % f32(c1)); e("v_mov_b32 v%d, %s" % (t, f32(c0)))
    e("v_mul_f32 v%d, v%d, v%d" % (y, g, g))
    e("v_fma_f32 v%d, v%d, s6, v%d" % (y, y, t))
    e("v_mul_f32 v%d, v%d, v%d" % (y, y, g))
    e("v_mul_f32 v%d, %s, v%d" % (y, f32(-2.0 * 1.4426950408889634), y))
    e("v_exp_f32 v%d, v%d" % (y, y))
    e("v_add_f32 v%d, 1.0, v%d" % (y, y))
    e("v_rcp_f32 v%d, v%d" % (y, y))
    e("v_mul_f32 v%d, v%d, v%d" % (y, y, g))
    bf16r(y)
    e("v_mul_f32 v%d, v%d, v%d" % (y, y, u))
    e("v_cvt_pk_bf16_f32 v%d, v%d, v%d" % (y, y, y))
    e("s_lshl_b32 s6, s%d, 7" % sJ)
    e("v_lshl_add_u32 v%d, v0, 1, s6" % vT1)
    e("ds_write_b16 v%d, v%d offset:%d" % (vT1, y, HB))
    lds_signal(C2)
    e("s_cmp_ge_u32 s%d, 5" % sJ); e("s_cbranch_scc1 L_ffn_end")
    lds_spin(C2, 8, "L_spin2")
    e("v_lshrrev_b32 v%d, 2, v%d" % (vT1, vR16))
    e("v_add_u32 v%d, v%d, v%d" % (vT1, vT1, vG))
    e("v_lshlrev_b32 v%d, 1, v%d" % (vT1, vT1))
    for b in range(8):
        e("ds_read_u16 v%d, v%d offset:%d" % (vXB + b, vT1, HB + 128 * b))
    e("s_waitcnt lgkmcnt(0)")
    for b in range(8):
        e("v_lshl_or_b32 v%d, v%d, 16, v%d" % (vXB + b, vXB + b, vXB + b))
    for i in range(16):
        e("s_waitcnt vmcnt(%d)" % (15 - i))
        for p in range(4):
            buildB2(p & 1, vXB + 2 * p, vXB + 2 * p + 1, i)
            mfma(FA + 4 * p, p & 1, slot(i), first=(i == 0))
    e("v_lshrrev_b32 v%d, 1, v%d" % (vT1, vG))
    e("v_mul_u32_u24 v%d, 9, v%d" % (vT1, vT1))
    e("v_lshrrev_b32 v58, 7, v%d" % vR16)
    e("v_add_u32 v%d, v%d, v58" % (vT1, vT1))
    e("s_lshl_b32 s6, s%d, 1" % sJ)
    e("v_add_u32 v%d, s6, v%d" % (vT1, vT1))
    e("v_mul_u32_u24 v%d, %d, v%d" % (vT1, NU * 256, vT1))
    e("v_and_b32 v58, 0x70, v%d" % vR16)
    e("v_lshl_add_u32 v%d, v58, 1, v%d" % (vT1, vT1))
    e("v_and_b32 v58, 1, v%d" % vG)
    e("v_lshl_add_u32 v%d, v58, 4, v%d" % (vT1, vT1))
    e("s_lshl_b32 s6, s2, 8"); e("s_add_u32 s6, s6, %d" % WS_B)
    e("s_cmp_eq_u32 s%d, 4" % sJ)
    e("s_cselect_b32 s36, 0x00ff00ff, -1")
    e("s_mov_b32 exec_lo, s36"); e("s_mov_b32 exec_hi, s36")
    for p in range(4):
        e("buffer_store_dwordx4 %s, v%d, %s, s6 offen sc1" % (vr(FA + 4 * p), vT1, srd(sWS)))
        if p < 3: e("s_add_u32 s6, s6, %d" % (18 * NU * 256))
    exec_all()
    e("v_mov_b32 v58, %d" % FCNT)
    e("s_waitcnt vmcnt(0)")
    exec_one()
    e("buffer_atomic_add v%d, v58, %s, 0 offen" % (vOne, srd(sDBG)))
    exec_all()
    e("L_ffn_end:")
    e("s_setprio 0")
    stamp(2)

    def gpoll(name, srdreg, voff_val, soff, target):
        e("v_mov_b32 v%d, %d" % (vT1, voff_val))
        e("%s:" % name)
        e("buffer_load_dword v%d, v%d, %s, %s offen sc1" % (vTk, vT1, srd(srdreg), soff))
        e("s_waitcnt vmcnt(0)")
        e("v_readfirstlane_b32 s7, v%d" % vTk)
        e("s_nop 3")
        e("s_cmp_ge_u32 s7, %s" % target)
        e("s_cbranch_scc1 %s_ok" % name)
        e("s_sleep 64")
        e("s_branch %s" % name)
        e("%s_ok:" % name)
    e("L_wait:")
    wos = [slot(k) for k in range(16)] + [52, 56, 44, 8]
    e("s_cmp_lg_u32 s%d, 4" % sW); e("s_cbranch_scc1 L_nocour")
    e("s_cmp_lt_u32 s2, %d" % NU); e("s_cbranch_scc1 L_bar1")
    e("s_setprio 2")
    lds_spin(C6, 1, "L_late6")
    gpoll("L_pq", sDBG, QCNT, "0", "%d" % NU)
    e("v_lshlrev_b32 v%d, 2, v0" % vT1)
    e("buffer_load_dword v%d, v%d, %s, s%d offen offset:256 sc1" % (vTk, vT1, srd(sWS), sCB))
    e("s_waitcnt vmcnt(0)")
    e("ds_write_b32 v%d, v%d offset:%d" % (vT1, vTk, QB2))
    e("s_waitcnt lgkmcnt(0)")
    exec_one()
    e("ds_write_b32 v%d, v%d offset:%d" % (vZ, vOne, C7))
    exec_all()
    lds_spin(C5, 4, "L_late5")
    for k in range(3):
        e("ds_read_b128 %s, v%d offset:%d" % (vr(slot(k)), vKV, FP + 1024 * k))
    e("s_add_u32 s6, s%d, s%d" % (sCB, sB2))
    e("s_waitcnt lgkmcnt(0)")
    e("buffer_store_dwordx4 %s, v%d, %s, s6 offen offset:1024 sc1" % (vr(slot(0)), vKV, srd(sWS)))
    e("buffer_store_dwordx4 %s, v%d, %s, s6 offen offset:2048 sc1" % (vr(slot(1)), vKV, srd(sWS)))
    e("s_mov_b64 exec, 15")
    e("buffer_store_dwordx4 %s, v%d, %s, s6 offen offset:3072 sc1" % (vr(slot(2)), vKV, srd(sWS)))
    e("s_waitcnt vmcnt(0)")
    exec_one()
    e("buffer_atomic_add v%d, v%d, %s, s%d offen" % (vOne, vZ, srd(sWS), sCB))
    exec_all()
    e("s_branch L_bar1")
    e("L_nocour:")
    e("s_cmp_lt_u32 s%d, 8" % sW); e("s_cbranch_scc1 L_bar1")
    e("s_waitcnt vmcnt(0) lgkmcnt(0)")
    e("s_cmp_lg_u32 s%d, 14" % sW); e("s_cbranch_scc1 L_nogate")
    for j in range(4):
        e("buffer_load_dwordx4 %s, v%d, %s, 0 offen offset:%d" % (vr(slot(j)), vKV, srd(sX if j < 2 else sGW), (j & 1) * 1024))
    e("s_waitcnt vmcnt(0)")
    acc = vAcc; x0, x1, g0, g1, pk = vAcc + 1, vAcc + 2, vAcc + 3, vAcc + 4, vAcc + 5
    e("v_mov_b32 v%d, 0" % acc)
    for p in (0, 1):
        for d in range(4):
            xs = slot(p) + d; gs = slot(2 + p) + d
            e("v_lshlrev_b32 v%d, 16, v%d" % (x0, xs)); e("v_and_b32 v%d, s%d, v%d" % (x1, sHi, xs))
            e("v_lshlrev_b32 v%d, 16, v%d" % (g0, gs)); e("v_and_b32 v%d, s%d, v%d" % (g1, sHi, gs))
            e("v_mul_f32 v%d, v%d, v%d" % (x0, x0, g0)); e("v_mul_f32 v%d, v%d, v%d" % (x1, x1, g1))
            bf16r2(x0, x1, pk)
            e("v_add_f32 v%d, v%d, v%d" % (acc, acc, x0)); e("v_add_f32 v%d, v%d, v%d" % (acc, acc, x1))
    row_allreduce("v_add_f32", [acc])
    cross_row("v_add_f32", acc)
    bf16r(acc)
    e("v_mul_f32 v%d, s%d, v%d" % (acc, sLog2e, acc))
    e("v_sub_f32 v%d, 0, v%d" % (acc, acc))
    e("v_exp_f32 v%d, v%d" % (acc, acc))
    e("v_add_f32 v%d, 1.0, v%d" % (acc, acc))
    e("v_rcp_f32 v%d, v%d" % (vAcc + 2, acc))
    bf16r(vAcc + 2)
    e("v_sub_f32 v%d, 1.0, v%d" % (vAcc + 3, vAcc + 2))
    bf16r(vAcc + 3)
    exec_one()
    e("ds_write_b64 v%d, %s offset:%d" % (vZ, vr(vAcc + 2, 2), GT))
    exec_all()
    e("L_nogate:")
    e("s_sub_u32 s7, s%d, 8" % sW); e("s_lshl_b32 s7, s7, 4")
    e("v_add_u32 v%d, s7, v%d" % (vW, vG))
    e("v_mul_u32_u24 v%d, 1152, v%d" % (vW, vW))
    e("v_add_u32 v%d, v%d, v%d" % (vW, vW, vR16))
    for i in range(4):
        if i: e("s_mov_b32 s%d, %d" % (sTmp, 4608 * i))
        for c in range(5):
            e(("buffer_load_dwordx4 %s, v%d, %s, %s offen offset:%d" + WF) % (vr(wos[5 * i + c]), vW, srd(sWO), ("s%d" % sTmp) if i else "0", c * 256))
    e("s_cmp_lg_u32 s%d, 15" % sW); e("s_cbranch_scc1 L_bar1")
    lds_spin(C3, 1, "L_late")
    e("s_setprio 2")
    gpoll("L_pf", sDBG, FCNT, "0", "%d" % (NU * 5))
    e("s_cmp_ge_u32 s2, %d" % NU); e("s_cbranch_scc1 L_nofp")
    gpoll("L_pd", sWS, 0, "s%d" % sCB, "s%d" % sNth)
    e("s_mul_i32 s6, s%d, 2112" % sNth)
    CQ = [24, 28, 32, 36, 40, 48, 20]
    e("s_add_u32 s7, s%d, 1024" % sCB); e("s_add_u32 s%d, s7, 4096" % sTmp)
    for k in range(7):
        e("buffer_load_dwordx4 %s, v%d, %s, s%d offen offset:%d sc1" % (vr(CQ[k]), vKV, srd(sWS), 7 if k < 4 else sTmp, 1024 * (k % 4)))
    e("s_waitcnt vmcnt(0)")
    for k in range(7):
        e("v_add_u32 v%d, %d, v%d" % (vT1, 1024 * k, vKV))
        e("v_cmp_gt_u32 vcc, s6, v%d" % vT1)
        e("s_and_saveexec_b64 s[44:45], vcc")
        e("s_cbranch_execz L_nf%d" % k)
        e("ds_write_b128 v%d, %s offset:%d" % (vT1, vr(CQ[k]), OP + 4 * 528))
        e("L_nf%d:" % k)
        exec_all()
    e("L_nofp:")
    e("s_setprio 0")
    stamp(3)
    e("s_branch L_bar1")

    e("L_fin:")
    e("s_nop 7")
    nst[0] = 4
    e("v_add_f32_dpp v%d, v%d, v%d row_ror:4 row_mask:0xf bank_mask:0xf" % (vL, vL, vL))
    e("v_add_f32_dpp v%d, v%d, v%d row_ror:8 row_mask:0xf bank_mask:0xf" % (vL, vL, vL))
    cross_row("v_add_f32", vL)
    e("s_mul_i32 s6, s%d, 528" % sW)
    e("s_mul_i32 s7, s%d, %d" % (sCurF, FP - OP)); e("s_add_u32 s6, s6, s7")
    e("v_add_u32 v%d, s6, v%d" % (vT1, vT0))
    exec_lo32()
    e("ds_write_b128 v%d, %s offset:%d" % (vT1, vr(vO), OP))
    e("s_mov_b32 exec_lo, 1")
    e("v_mov_b32 v%d, s6" % vT1)
    e("v_mov_b32 v%d, v%d" % (vX0, vM)); e("v_mov_b32 v%d, v%d" % (vX0 + 1, vL))
    e("ds_write_b64 v%d, %s offset:%d" % (vT1, vr(vX0, 2), OP + 512))
    e("s_cmp_eq_u32 s%d, 0" % sCurF); e("s_cbranch_scc1 L_fin2")
    e("s_waitcnt lgkmcnt(0)")
    e("ds_add_u32 v%d, v%d offset:%d" % (vZ, vOne, C5))
    exec_all()
    for k in range(4): e("v_mov_b32 v%d, v%d" % (vO + k, vSave + k))
    for k in range(4): e("v_mov_b32 v%d, v%d" % (vQ + k, vSave + 4 + k))
    e("v_mov_b32 v%d, v%d" % (vM, vSave + 8)); e("v_mov_b32 v%d, v%d" % (vL, vSave + 9))
    e("s_mov_b32 s%d, 0" % sCurF)
    e("s_nop 3")
    e("s_branch L_back")
    e("L_fin2:")
    exec_all()
    e("s_cmp_eq_u32 s62, 1"); e("s_cbranch_scc0 L_fin3")
    e("s_setprio 0")
    e("s_branch L_wait")
    e("L_fin3:")
    stamp()
    e("L_bar1:")
    barrier()
    stamp()
    e("s_cmp_lt_u32 s%d, 8" % sW); e("s_cbranch_scc1 L_bar2")
    vOc = vO
    mr, lr, mm = 12, 13, 14
    e("v_mul_u32_u24 v%d, 33, v%d" % (vT1, vR16))
    e("ds_read_b64 %s, v%d offset:%d" % (vr(mr, 2), vT1, OP + 512))
    e("v_lshl_add_u32 v%d, v%d, 2, v%d" % (vT1, vG, vT1))
    e("s_sub_u32 s6, s%d, 8" % sW); e("s_lshl_b32 s6, s6, 6")
    e("v_add_u32 v%d, s6, v%d" % (vT1, vT1))
    for i in range(4):
        e("ds_read_b32 v%d, v%d offset:%d" % (vOc + i, vT1, OP + 16 * i))
    e("s_waitcnt lgkmcnt(0)")
    e("v_mov_b32 v%d, v%d" % (mm, mr))
    row_allreduce("v_max_f32", [mm])
    e("v_sub_f32 v%d, v%d, v%d" % (mr, mr, mm))
    e("v_mul_f32 v%d, s%d, v%d" % (mr, sLog2e, mr))
    e("v_exp_f32 v%d, v%d" % (mr, mr))
    for r in [lr] + [vOc + i for i in range(4)]: e("v_mul_f32 v%d, v%d, v%d" % (r, r, mr))
    row_allreduce("v_add_f32", [lr] + [vOc + i for i in range(4)])
    e("v_rcp_f32 v%d, v%d" % (lr, lr))
    for i in range(4): e("v_mul_f32 v%d, v%d, v%d" % (vOc + i, vOc + i, lr))
    for i in range(4): e("v_cvt_pk_bf16_f32 v%d, v%d, v%d" % (vOc + i, vOc + i, vOc + i))
    e("s_waitcnt vmcnt(0)")
    OA = [32, 36, 40, 48, 12]
    for i in range(4):
        buildB(i & 1, vOc + i)
        for c in range(5):
            mfma(OA[c], i & 1, wos[5 * i + c], first=(i == 0))
    e("s_sub_u32 s6, s%d, 8" % sW); e("s_mul_i32 s6, s6, 2560")
    e("v_add_u32 v%d, s6, v%d" % (vT1, vT0))
    exec_lo32()
    for c in range(5):
        e("ds_write_b128 v%d, %s offset:%d" % (vT1, vr(OA[c]), AP + 512 * c))
    exec_all()
    e("L_bar2:")
    barrier()
    stamp()
    e("s_cmp_ge_u32 s%d, 9" % sW); e("s_cbranch_scc1 %s" % ("L_st" if stamps else "L_done"))
    e("s_lshl_b32 s6, s%d, 8" % sW)
    e("v_lshl_add_u32 v%d, v0, 2, s6" % vT1)
    e("v_mov_b32 v%d, 0" % vW)
    for w in range(8):
        e("ds_read_b32 v%d, v%d offset:%d" % (vAcc + w, vT1, AP + 2560 * w))
    e("ds_read_b64 %s, v%d offset:%d" % (vr(vQ, 2), vW, GT))
    e("v_lshlrev_b32 v%d, 2, v0" % vT1)
    e("s_lshr_b32 s6, s%d, 1" % sC); e("s_lshl_b32 s6, s6, 2")
    e("s_and_b32 s7, s%d, 1" % sC); e("s_lshl_b32 s7, s7, 4")
    e("s_lshl_b32 s%d, 1, s7" % sA)
    e("v_mov_b32 v%d, s%d" % (vXc, sA)); e("v_mov_b32 v%d, s6" % vW)
    e("s_waitcnt lgkmcnt(0)")
    for st in (4, 2, 1):
        for w in range(st):
            e("v_add_f32 v%d, v%d, v%d" % (vAcc + w, vAcc + w, vAcc + w + st))
    e("buffer_store_dword v%d, v%d, %s, s%d offen sc1" % (vAcc, vT1, srd(sWS), sWsOff))
    e("s_waitcnt vmcnt(0)")
    stamp()
    exec_one()
    e("buffer_atomic_add v%d, v%d, %s, 0 offen sc0" % (vXc, vW, srd(sDBG)))
    e("s_waitcnt vmcnt(0)")
    e("v_readfirstlane_b32 s%d, v%d" % (sA, vXc))
    exec_all()
    e("s_lshr_b32 s%d, s%d, s7" % (sA, sA)); e("s_and_b32 s%d, s%d, 0xffff" % (sA, sA))
    stamp()
    e("s_cmp_lg_u32 s%d, 31" % sA); e("s_cbranch_scc1 %s" % ("L_st" if stamps else "L_done"))
    FB = 24
    e("s_lshl_b32 s6, s%d, 13" % sC)
    e("s_mul_i32 s%d, s%d, %d" % (sA, sC, NU * 256)); e("s_add_u32 s%d, s%d, %d" % (sA, sA, WS_B))
    n = 0
    for base, cnt in (("s6", 8), ("s%d" % sA, 18)):
        for i in range(cnt):
            if i % 4 == 0:
                e("s_add_u32 s7, %s, %d" % (base, (i // 4) * 4096))
            e("buffer_load_dwordx4 %s, v%d, %s, s7 offen offset:%d sc1" % (vr(FB + 4 * n), vKV, srd(sWS), (i % 4) * 1024))
            n += 1
    def tree(b0, cnt):
        regs = [b0 + 4 * i for i in range(cnt)]
        while len(regs) > 1:
            half = (len(regs) + 1) // 2
            for i in range(len(regs) - half):
                for d in range(4):
                    e("v_add_f32 v%d, v%d, v%d" % (regs[i] + d, regs[i] + d, regs[half + i] + d))
            regs = regs[:half]
        e("v_permlane32_swap_b32 v%d, v%d" % (b0, b0 + 2))
        e("v_permlane32_swap_b32 v%d, v%d" % (b0 + 1, b0 + 3))
        e("v_add_f32 v%d, v%d, v%d" % (b0, b0, b0 + 2))
        e("v_add_f32 v%d, v%d, v%d" % (b0 + 1, b0 + 1, b0 + 3))
        e("v_permlane16_swap_b32 v%d, v%d" % (b0, b0 + 1))
        e("v_add_f32 v%d, v%d, v%d" % (b0, b0, b0 + 1))
    e("s_waitcnt vmcnt(18)")
    tree(FB, 8)
    e("s_waitcnt vmcnt(0)")
    tree(FB + 32, 18)
    A, Bq = FB, FB + 32
    bf16r2(A, Bq, vT1)
    e("v_mul_f32 v%d, v%d, v%d" % (A, A, vQ)); e("v_mul_f32 v%d, v%d, v%d" % (Bq, Bq, vQ + 1))
    bf16r2(A, Bq, vT1)
    e("v_add_f32 v%d, v%d, v%d" % (A, A, Bq))
    e("v_cvt_pk_bf16_f32 v%d, v%d, v%d" % (A, A, A))
    e("s_mul_i32 s6, s%d, 576" % sBt); e("s_lshl_b32 s7, s%d, 6" % sW); e("s_add_u32 s6, s6, s7")
    e("v_lshrrev_b32 v%d, 2, v%d" % (vT1, vR16))
    e("v_add3_u32 v%d, v%d, v%d, s6" % (vT1, vT1, vG))
    e("v_lshlrev_b32 v%d, 1, v%d" % (vT1, vT1))
    e("buffer_store_short v%d, v%d, %s, 0 offen" % (A, vT1, srd(sOUT)))
    if stamps:
        e("s_waitcnt vmcnt(0)")
        stamp()
        e("L_st:")
        e("s_lshl_b32 s6, s2, 4"); e("s_add_u32 s6, s6, s%d" % sW); e("s_lshl_b32 s6, s6, 8"); e("s_add_u32 s6, s6, 0x800000")
        e("v_lshlrev_b32 v%d, 2, v0" % vT1)
        e("s_nop 4")
        e("buffer_store_dword v%d, v%d, %s, s6 offen" % (vSt, vT1, srd(sWS)))
    e("L_done:")
    e("s_endpgm")

    body = a.finish()
    assert LDS_USED <= LDS_BYTES and AP + 2560 * 7 < 65536 and GP + 3072 < 65536
    out = [HDR.rstrip(), "; @launch grid=(256,1,1) block=(1024,1,1) lds=%d" % LDS_BYTES,
           '.amdgcn_target "amdgcn-amd-amdhsa--gfx950"', ".text", ".globl %s" % KN, ".p2align 8",
           ".type %s,@function" % KN, "%s:" % KN] + body + [
           '.section .rodata,"a"', ".p2align 6", ".amdhsa_kernel %s" % KN,
           "  .amdhsa_next_free_vgpr 128", "  .amdhsa_next_free_sgpr 102", "  .amdhsa_accum_offset 128",
           "  .amdhsa_group_segment_fixed_size 0", "  .amdhsa_kernarg_size 104", "  .amdhsa_user_sgpr_count 2",
           "  .amdhsa_user_sgpr_kernarg_segment_ptr 1", "  .amdhsa_system_sgpr_workgroup_id_x 1", ".end_amdhsa_kernel"]
    return "\n".join(out) + "\n"

if __name__ == "__main__":
    dst = sys.argv[1]
    kw = {}
    for x in sys.argv[2:]:
        k, v = x.split("=")
        kw[k] = int(v)
    open(dst, "w").write(gen(**kw))
    print("wrote", dst, "LDS", LDS_USED, "GP", GP, "AP", AP)
```

```python
import sys, struct
from asmlib import Asm
REF = open("gated_mix__mha_block_cached__glu_gated_geglu__decode.s.ref").read()
HDR = REF.split("; Override launch")[0]
KN = "gated_mix__mha_block_cached__glu_gated_geglu__decode_kernel"

def f32(x):
    return "0x%08x" % struct.unpack("<I", struct.pack("<f", x))[0]

vLane, vKV, vR16, vG = 0, 1, 2, 3
vMask = 4
vQ = 8
vXc, vM, vL, vTk, vSt, vW, vT0, vT1 = 12, 13, 14, 15, 16, 17, 18, 19
vO = 20
vB = 24
vAcc = 32
vS = 32; vT = 40; vU = 44; vN, vAl = 46, 47
vX0 = 48
SLOT16 = 56
vZ, vOne = 60, 61
RING0 = 64
sW, sBt, sH = 3, 4, 5
sK, sV, sWQ, sXA, sWU_, sWD, sWO = 8, 12, 16, 20, 24, 28, 32
pX, pK, pV, pWQ, pWO, pBX, pWG, pWU, pWD, pGW, pOUT, pDBG, pWS = 36, 38, 40, 42, 44, 46, 48, 50, 52, 54, 56, 58, 60
sX, sGW, sWS, sOUT, sDBG = 64, 68, 72, 76, 80
sKV, sOff, sTmp, sOff2 = 84, 85, 86, 87
sR = 88
sA, sB2, sC, sNxt = 92, 93, 94, 95
sScale, sLog2e = 96, 97
sWsOff = 98
sHi = 99
sIt, sJ = 62, 63
QP = 0
QB = 8192
TK = QB + 512
GT = TK + 16
C1 = TK + 32
C2 = TK + 36
C3 = TK + 40
C5 = TK + 44
C6 = TK + 48
C7 = TK + 52
C8 = TK + 56
C9 = TK + 60
HB = TK + 64
OP = HB + 1024
FP = OP + 16 * 528
QB2 = FP + 4 * 528
XS = QB2 + 256
AP = XS + 9216
GP = AP + 8 * 2560
LDS_USED = GP + 12 * 4096
LDS_BYTES = 104 * 1024
NS = 4
NBLK = 128
NU = 72
WS_A = 0
WS_B = 8 * 9 * 32 * 256
WS_C = WS_B + 8 * 9 * NU * 256
WS_SIZE = WS_C + NU * 8192
QCNT = 164
INV = 256
sCB, sKVb, sSeq, sLimO, sFb, sCurF, sItc, sNth = 24, 25, 26, 27, 40, 41, 42, 43
vSave = 96
FCNT = 160

def srd(x):
    return "s[%d:%d]" % (x, x + 3)
def vr(x, n=4):
    return "v[%d:%d]" % (x, x + n - 1)

def gen(stamps=False, wnt=0, prio=0, sprio=3, ring=8, fake=0, fnt=1, itsw=10, nos=8):
    FF = ' nt' if fnt else ''
    WF = " nt" if wnt else ""
    a = Asm(); e = a.e
    slot = lambda i: RING0 + 4 * i
    def make_srd(d, p, off_sgpr, size):
        if off_sgpr is None:
            e("s_mov_b32 s%d, s%d" % (d, p)); e("s_and_b32 s%d, s%d, 0xffff" % (d + 1, p + 1))
        else:
            e("s_add_u32 s%d, s%d, s%d" % (d, p, off_sgpr)); e("s_addc_u32 s%d, s%d, 0" % (d + 1, p + 1))
            e("s_and_b32 s%d, s%d, 0xffff" % (d + 1, d + 1))
        e("s_mov_b32 s%d, 0x%x" % (d + 2, size)); e("s_mov_b32 s%d, 0x20000" % (d + 3))
    def exec_lo32():
        e("s_mov_b32 exec_lo, -1"); e("s_mov_b32 exec_hi, 0")
    def exec_one(): e("s_mov_b64 exec, 1")
    def exec_all(): e("s_mov_b64 exec, -1")
    def bf16r2(x, y, t):
        e("v_cvt_pk_bf16_f32 v%d, v%d, v%d" % (t, x, y))
        e("v_lshlrev_b32 v%d, 16, v%d" % (x, t))
        e("v_and_b32 v%d, s%d, v%d" % (y, sHi, t))
    def bf16r(x):
        e("v_cvt_pk_bf16_f32 v%d, v%d, v%d" % (x, x, x))
        e("v_lshlrev_b32 v%d, 16, v%d" % (x, x))
    def row_allreduce(op, regs):
        for sh in (1, 2, 4, 8):
            for r in regs:
                e("%s_dpp v%d, v%d, v%d row_ror:%d row_mask:0xf bank_mask:0xf" % (op, r, r, r, sh))
    def quad_allreduce(op, regs):
        for qp in ("[1,0,3,2]", "[2,3,0,1]"):
            for r in regs:
                e("%s_dpp v%d, v%d, v%d quad_perm:%s row_mask:0xf bank_mask:0xf" % (op, r, r, r, qp))
    def cross_row(op, x, init=None):
        for k in range(4):
            e("v_readlane_b32 s%d, v%d, %d" % (sR + k, x, 16 * k))
        if init is None: e("v_mov_b32 v%d, s%d" % (x, sR))
        else: e("%s v%d, s%d, v%d" % (op, x, sR, init))
        for k in (1, 2, 3):
            e("%s v%d, s%d, v%d" % (op, x, sR + k, x))
    def buildB(bset, coef, lane=None):
        for w in range(4):
            if lane is None:
                e("v_and_b32 v%d, v%d, v%d" % (vB + 4 * bset + w, coef, vMask + w))
            else:
                e("v_and_b32_dpp v%d, v%d, v%d row_newbcast:%d row_mask:0xf bank_mask:0xf" % (vB + 4 * bset + w, coef, vMask + w, lane))
    def buildB2(bset, c0, c1, lane):
        for w in range(4):
            e("v_and_b32_dpp v%d, v%d, v%d row_newbcast:%d row_mask:0xf bank_mask:0x3" % (vB + 4 * bset + w, c0, vMask + w, lane))
            e("v_and_b32_dpp v%d, v%d, v%d row_newbcast:%d row_mask:0xf bank_mask:0xc" % (vB + 4 * bset + w, c1, vMask + w, lane))
    def mfma(acc, bset, s, first=False):
        e("v_mfma_f32_16x16x32_bf16 %s, %s, %s, %s" % (vr(acc), vr(vB + 4 * bset), vr(s), "0" if first else vr(acc)))
    def barrier():
        e("s_waitcnt lgkmcnt(0)"); e("s_barrier")
    nst = [0]
    def stamp(k=None):
        if not stamps: return
        if k is None:
            k = nst[0]; nst[0] += 1
        e("s_memrealtime s[100:101]")
        e("s_waitcnt lgkmcnt(0)")
        e("v_writelane_b32 v%d, s100, %d" % (vSt, k))
    def kv_load(m, i, s):
        e("buffer_load_dwordx4 %s, v%d, %s, s%d offen offset:%d nt" % (vr(s), vKV, srd(sK if m == 0 else sV), sOff if i < 4 else sOff2, (i % 4) * 1024))
    def set_off(sblk, own_only=False):
        e("s_and_b32 s%d, s%d, 127" % (sOff, sblk))
        e("s_lshl_b32 s%d, s%d, 13" % (sOff, sOff))
        if own_only:
            e("s_add_u32 s%d, s%d, s%d" % (sOff, sOff, sKV))
        else:
            e("s_cmp_ge_u32 s%d, 128" % sblk)
            e("s_cselect_b32 s%d, s%d, s%d" % (sOff2, sKVb, sKV))
            e("s_add_u32 s%d, s%d, s%d" % (sOff, sOff, sOff2))
        e("s_cmp_ge_u32 s%d, %d" % (sblk, INV))
        e("s_cselect_b32 s%d, 0xf0000000, s%d" % (sOff, sOff))
        e("s_add_u32 s%d, s%d, 4096" % (sOff2, sOff))
    def lds_signal(off):
        e("s_waitcnt lgkmcnt(0)")
        exec_one()
        e("ds_add_u32 v%d, v%d offset:%d" % (vZ, vOne, off))
        exec_all()
    def lds_spin(off, target, name):
        e("%s:" % name)
        e("ds_read_b32 v%d, v%d offset:%d" % (vTk, vZ, off))
        e("s_waitcnt lgkmcnt(0)")
        e("v_readfirstlane_b32 s7, v%d" % vTk)
        e("s_nop 3")
        e("s_cmp_ge_u32 s7, %d" % target)
        e("s_cbranch_scc1 %s_ok" % name)
        e("s_sleep %d" % (40 if name.startswith("L_late") else 3))
        e("s_branch %s" % name)
        e("%s_ok:" % name)

    e("s_cmp_ge_u32 s2, 256"); e("s_cbranch_scc1 L_done")
    e("s_load_dwordx16 s[36:51], s[0:1], 0")
    e("s_load_dwordx8 s[52:59], s[0:1], 64")
    e("s_load_dwordx2 s[60:61], s[0:1], 96")
    e("v_lshrrev_b32 v%d, 6, v0" % vW)
    e("v_and_b32 v0, 63, v0")
    e("v_readfirstlane_b32 s%d, v%d" % (sW, vW))
    e("s_and_b32 s6, s2, 7"); e("s_lshr_b32 s7, s2, 3"); e("s_and_b32 s%d, s7, 3" % sH)
    e("s_lshl_b32 s6, s6, 2"); e("s_add_u32 s%d, s%d, s6" % (sH, sH)); e("s_lshr_b32 s%d, s7, 2" % sBt)
    e("s_mov_b32 s%d, %s" % (sScale, f32(128 ** -0.5)))
    e("s_mov_b32 s%d, %s" % (sLog2e, f32(1.4426950408889634)))
    e("s_mov_b32 s%d, 0xffff0000" % sHi)
    if stamps: e("v_mov_b32 v%d, 0" % vSt)
    e("v_and_b32 v%d, 15, v0" % vT0)
    e("v_lshrrev_b32 v%d, 4, v0" % vG)
    e("v_lshlrev_b32 v%d, 4, v%d" % (vR16, vT0))
    e("v_lshlrev_b32 v%d, 4, v0" % vKV)
    e("s_mul_i32 s7, s%d, 36" % sW)
    e("v_min_u32 v%d, 8, v%d" % (vT1, vT0))
    e("v_lshl_add_u32 v%d, v%d, 2, v%d" % (vT1, vT1, vG))
    e("v_add_u32 v%d, s7, v%d" % (vT1, vT1))
    e("v_lshlrev_b32 v%d, 1, v%d" % (vT1, vT1))
    e("v_add_u32 v%d, s7, v%d" % (vW, vG))
    e("v_lshlrev_b32 v%d, 13, v%d" % (vW, vW))
    e("v_add_u32 v%d, v%d, v%d" % (vW, vW, vR16))
    e("s_lshl_b32 s%d, s%d, 5" % (sKV, sBt)); e("s_add_u32 s%d, s%d, s%d" % (sKV, sKV, sH)); e("s_lshl_b32 s%d, s%d, 20" % (sKV, sKV))
    e("s_mul_i32 s%d, s%d, 1152" % (sA, sBt))
    e("s_lshl_b32 s%d, s%d, 8" % (sB2, sH))
    e("s_sub_u32 s6, s%d, 5" % sW)
    e("s_cmp_ge_u32 s2, %d" % NU); e("s_cselect_b32 s7, %d, 0" % nos)
    e("s_add_u32 s%d, s6, 4" % sNxt)
    e("s_cmp_lt_u32 s6, s7"); e("s_cselect_b32 s%d, s%d, %d" % (sNxt, sNxt, INV)); e("s_cselect_b32 s62, 1, 0")
    e("s_cmp_lt_u32 s%d, %d" % (sW, NS)); e("s_cselect_b32 s%d, s%d, s%d" % (sNxt, sW, sNxt))
    set_off(sNxt, own_only=True)
    e("s_waitcnt lgkmcnt(0)")
    stamp()
    make_srd(sX, pX, sA, 1152)
    opx = a.vmem("buffer_load_ushort v%d, v%d, %s, 0 offen" % (vXc, vT1, srd(sX)))
    make_srd(sWQ, pWQ, sB2, 575 * 8192 + 256)
    make_srd(sK, pK, None, 0x10000000)
    make_srd(sV, pV, None, 0x10000000)
    wqs = [slot(8 + i) for i in range(8)] + [SLOT16]
    wqop = []
    for i in range(9):
        if i: e("s_mov_b32 s%d, 0x%x" % (sTmp, i * 32768))
        wqop.append(a.vmem(("buffer_load_dwordx4 %s, v%d, %s, %s offen" + WF) % (vr(wqs[i]), vW, srd(sWQ), ("s%d" % sTmp) if i else "0")))
    make_srd(sXA, pX, None, 9216)
    e("s_sub_u32 s6, s%d, 4" % sW); e("s_lshl_b32 s6, s6, 10")
    e("s_cmp_ge_u32 s2, %d" % NU); e("s_cselect_b32 s%d, 0x70000000, s6" % sTmp)
    opxs = a.vmem("buffer_load_dwordx4 %s, v%d, %s, s%d offen" % (vr(vX0 + 4), vKV, srd(sXA), sTmp))
    e("v_and_b32 v%d, 16, v%d" % (vT1, vR16))
    e("v_mov_b32 v%d, 0xffff" % vT0)
    e("v_lshlrev_b32 v%d, v%d, v%d" % (vT0, vT1, vT0))
    e("v_bfe_u32 v%d, v%d, 5, 2" % (vT1, vR16))
    for w in range(4):
        e("v_cmp_eq_u32 vcc, %d, v%d" % (w, vT1))
        e("v_cndmask_b32 v%d, 0, v%d, vcc" % (vMask + w, vT0))
    e("s_mul_i32 s%d, s2, %d" % (sA, 64 * 1152))
    e("s_cmp_ge_u32 s2, %d" % NU); e("s_cselect_b32 s%d, 0, s%d" % (sA, sA))
    make_srd(sWD, pWD, sA, 64 * 1152)
    e("s_mul_i32 s%d, s%d, %d" % (sA, sH, 128 * 1152))
    make_srd(sWO, pWO, sA, 128 * 1152)
    make_srd(sGW, pGW, None, 1152)
    make_srd(sWS, pWS, None, (64 << 20) if stamps else WS_SIZE)
    make_srd(sOUT, pOUT, None, 4608 * 2)
    make_srd(sDBG, pDBG, None, 256)
    e("s_mul_i32 s%d, s%d, 9" % (sC, sBt)); e("s_add_u32 s%d, s%d, s%d" % (sC, sC, sW))
    e("s_lshl_b32 s%d, s%d, 5" % (sWsOff, sC)); e("s_add_u32 s%d, s%d, s%d" % (sWsOff, sWsOff, sH))
    e("s_lshl_b32 s%d, s%d, 8" % (sWsOff, sWsOff))
    e("s_cmp_lt_u32 s2, 40"); e("s_cselect_b32 s%d, 3, 2" % sNth)
    e("s_cmp_lt_u32 s2, %d" % NU); e("s_cselect_b32 s%d, s%d, 0" % (sNth, sNth))
    e("s_lshl_b32 s6, s%d, 2" % sNth); e("s_sub_u32 s%d, 128, s6" % sLimO)
    e("s_sub_u32 s6, s2, %d" % NU)
    e("s_cmp_ge_u32 s6, 144"); e("s_cselect_b32 s7, 2, 1"); e("s_cmp_lt_u32 s6, 72"); e("s_cselect_b32 s7, 0, s7")
    e("s_mul_i32 s%d, s7, 72" % sA); e("s_sub_u32 s6, s6, s%d" % sA)
    e("s_cmp_lt_u32 s2, %d" % NU); e("s_cselect_b32 s6, s2, s6")
    e("s_lshl_b32 s%d, s6, 13" % sCB); e("s_add_u32 s%d, s%d, %d" % (sCB, sCB, WS_C))
    e("s_lshl_b32 s%d, s7, 2" % sFb); e("s_sub_u32 s%d, %d, s%d" % (sFb, 128 + 124, sFb)); e("s_add_u32 s%d, s%d, s%d" % (sFb, sFb, sW))
    e("s_mul_i32 s%d, s7, 2112" % sB2)
    e("s_and_b32 s%d, s6, 7" % sA); e("s_lshl_b32 s%d, s%d, 2" % (sA, sA)); e("s_lshr_b32 s7, s6, 3")
    e("s_and_b32 s%d, s7, 3" % sKVb); e("s_add_u32 s%d, s%d, s%d" % (sKVb, sKVb, sA))
    e("s_lshr_b32 s7, s7, 2"); e("s_lshl_b32 s7, s7, 5"); e("s_add_u32 s%d, s%d, s7" % (sKVb, sKVb)); e("s_lshl_b32 s%d, s%d, 20" % (sKVb, sKVb))
    e("s_cmp_ge_u32 s2, %d" % NU); e("s_cselect_b32 s7, %d, 4" % (nos + 4)); e("s_add_u32 s%d, s%d, s7" % (sSeq, sW)); e("s_mov_b32 s%d, 0" % sCurF)
    e("s_cmp_eq_u32 s62, 1"); e("s_cselect_b32 s%d, 128, s%d" % (sSeq, sSeq))
    e("s_cmp_lt_u32 s2, %d" % NU); e("s_cselect_b32 s%d, 1000, %d" % (sItc, itsw))
    e("s_cmp_eq_u32 s62, 1"); e("s_cselect_b32 s%d, 1000, s%d" % (sItc, sItc))
    e("v_mov_b32 v%d, 0xff7fffff" % vM)
    e("v_mov_b32 v%d, 0" % vL)
    for k in range(4): e("v_mov_b32 v%d, 0" % (vO + k))
    e("v_mov_b32 v%d, 0" % vZ); e("v_mov_b32 v%d, 1" % vOne)
    e("v_lshlrev_b32 v%d, 1, v%d" % (vT0, vR16))
    e("v_lshl_add_u32 v%d, v%d, 4, v%d" % (vT0, vG, vT0))
    e("ds_write_b32 v%d, v%d offset:%d" % (vZ, vZ, C1))
    e("ds_write_b32 v%d, v%d offset:%d" % (vZ, vZ, C2))
    e("ds_write_b32 v%d, v%d offset:%d" % (vZ, vZ, C3))
    e("ds_write_b32 v%d, v%d offset:%d" % (vZ, vZ, C5))
    e("ds_write_b32 v%d, v%d offset:%d" % (vZ, vZ, C6))
    e("ds_write_b32 v%d, v%d offset:%d" % (vZ, vZ, C7))
    e("ds_write_b32 v%d, v%d offset:%d" % (vZ, vZ, C8))
    e("ds_write_b32 v%d, v%d offset:%d" % (vZ, vZ, C9))
    e("s_cmp_lt_u32 s%d, 4" % sW); e("s_cbranch_scc1 L_noinit")
    e("s_mul_i32 s6, s%d, 528" % sW)
    e("v_add_u32 v%d, s6, v%d" % (vT1, vT0))
    exec_lo32()
    e("ds_write_b128 v%d, %s offset:%d" % (vT1, vr(vO), OP))
    e("s_mov_b32 exec_lo, 1")
    e("v_mov_b32 v%d, s6" % vT1)
    e("v_mov_b32 v%d, v%d" % (vX0, vM)); e("v_mov_b32 v%d, 0" % (vX0 + 1))
    e("ds_write_b64 v%d, %s offset:%d" % (vT1, vr(vX0, 2), OP + 512))
    e("s_cmp_lg_u32 s%d, 15" % sW); e("s_cbranch_scc1 L_noinit2")
    e("s_cmp_ge_u32 s2, %d" % NU); e("s_cbranch_scc1 L_noinit2")
    e("buffer_store_dword v%d, v%d, %s, s%d offen sc1" % (vZ, vZ, srd(sWS), sCB))
    e("L_noinit2:")
    exec_all()
    e("L_noinit:")
    a.wait_vm(opx)
    for i in range(8):
        kv_load(0, i, slot(i)); a.vm.append(len(a.vm))
    e("v_lshl_or_b32 v%d, v%d, 16, v%d" % (vXc, vXc, vXc))
    for i in range(9):
        buildB(i & 1, vXc, i)
        a.wait_vm(wqop[i])
        mfma(vAcc, i & 1, wqs[i], first=(i == 0))
        if i < 8 and ring == 16:
            kv_load(1, i, slot(8 + i)); a.vm.append(len(a.vm))
    e("s_lshl_b32 s6, s%d, 9" % sW)
    e("v_add_u32 v%d, s6, v%d" % (vT1, vT0))
    exec_lo32()
    e("ds_write_b128 v%d, %s offset:%d" % (vT1, vr(vAcc), QP))
    exec_all()
    e("s_sub_u32 s6, s%d, 4" % sW)
    e("s_cmp_ge_u32 s6, 9"); e("s_cbranch_scc1 L_noxs")
    a.wait_vm(opxs)
    e("s_lshl_b32 s6, s6, 10")
    e("v_add_u32 v%d, s6, v%d" % (vT1, vKV))
    e("ds_write_b128 v%d, %s offset:%d" % (vT1, vr(vX0 + 4), XS))
    e("L_noxs:")
    barrier()
    e("s_cmp_ge_u32 s%d, 2" % sW); e("s_cbranch_scc1 L_qred")
    e("s_lshl_b32 s6, s%d, 6" % sW)
    e("v_add_u32 v%d, s6, v0" % vT1)
    e("v_lshlrev_b32 v%d, 2, v%d" % (vX0, vT1))
    for w in range(16):
        e("ds_read_b32 v%d, v%d offset:%d" % (vAcc + w, vX0, QP + 512 * w))
    e("s_waitcnt lgkmcnt(0)")
    for st in (8, 4, 2, 1):
        for w in range(st):
            e("v_add_f32 v%d, v%d, v%d" % (vAcc + w, vAcc + w, vAcc + w + st))
    e("v_cvt_pk_bf16_f32 v%d, v%d, v%d" % (vAcc, vAcc, vAcc))
    e("v_lshlrev_b32 v%d, 1, v%d" % (vT1, vT1))
    e("ds_write_b16 v%d, v%d offset:%d" % (vT1, vAcc, QB))
    e("L_qred:")
    barrier()
    e("s_cmp_eq_u32 s62, 1"); e("s_cbranch_scc1 L_goloop")
    e("s_cmp_ge_u32 s%d, %d" % (sW, NS)); e("s_cbranch_scc1 L_other")
    e("L_goloop:")
    e("ds_read_b128 %s, v%d offset:%d" % (vr(vQ), vR16, QB))
    e("s_setprio %d" % sprio)
    e("s_waitcnt lgkmcnt(0)")
    stamp()

    BANK_OF = {0: 0, 1: 2, 2: 1, 3: 3}
    e("L_loop:")
    e("s_sub_u32 s%d, s%d, 1" % (sItc, sItc))
    e("s_cmp_lt_u32 s%d, s%d" % (sSeq, sLimO)); e("s_cselect_b32 s%d, s%d, %d" % (sNxt, sSeq, INV))
    e("s_cmp_eq_u32 s%d, 0" % sItc); e("s_cselect_b32 s%d, s%d, s%d" % (sNxt, sFb, sNxt))
    e("s_cselect_b32 s6, 0, 4"); e("s_add_u32 s%d, s%d, s6" % (sSeq, sSeq))
    for i in range(8):
        e("s_waitcnt vmcnt(%d)" % (ring - 1))
        s = slot(i)
        e("v_dot2_f32_bf16 v%d, v%d, v%d, 0" % (vS + i, s, vQ))
        for d in (1, 2, 3):
            e("v_dot2_f32_bf16 v%d, v%d, v%d, v%d" % (vS + i, s + d, vQ + d, vS + i))
        kv_load(0 if ring == 16 else 1, i, s)
    if ring == 8: set_off(sNxt)
    for half in (0, 1):
        s0 = vS + 4 * half; t0 = vT + 2 * half
        e("v_add_f32_dpp v%d, v%d, v%d row_ror:8 row_mask:0xf bank_mask:0x3" % (t0, s0, s0))
        e("v_add_f32_dpp v%d, v%d, v%d row_ror:8 row_mask:0xf bank_mask:0xc" % (t0, s0 + 1, s0 + 1))
        e("v_add_f32_dpp v%d, v%d, v%d row_ror:8 row_mask:0xf bank_mask:0x3" % (t0 + 1, s0 + 2, s0 + 2))
        e("v_add_f32_dpp v%d, v%d, v%d row_ror:8 row_mask:0xf bank_mask:0xc" % (t0 + 1, s0 + 3, s0 + 3))
    for half in (0, 1):
        t0 = vT + 2 * half
        e("v_add_f32_dpp v%d, v%d, v%d row_half_mirror row_mask:0xf bank_mask:0x5" % (vU + half, t0, t0))
        e("v_add_f32_dpp v%d, v%d, v%d row_half_mirror row_mask:0xf bank_mask:0xa" % (vU + half, t0 + 1, t0 + 1))
    for qp in ("[1,0,3,2]", "[2,3,0,1]"):
        for half in (0, 1):
            e("v_add_f32_dpp v%d, v%d, v%d quad_perm:%s row_mask:0xf bank_mask:0xf" % (vU + half, vU + half, vU + half, qp))
    bf16r2(vU, vU + 1, vT)
    e("v_mul_f32 v%d, s%d, v%d" % (vU, sScale, vU)); e("v_mul_f32 v%d, s%d, v%d" % (vU + 1, sScale, vU + 1))
    bf16r2(vU, vU + 1, vT)
    e("v_max_f32 v%d, v%d, v%d" % (vN, vU, vU + 1))
    e("v_max_f32_dpp v%d, v%d, v%d row_ror:4 row_mask:0xf bank_mask:0xf" % (vN, vN, vN))
    e("v_max_f32_dpp v%d, v%d, v%d row_ror:8 row_mask:0xf bank_mask:0xf" % (vN, vN, vN))
    cross_row("v_max_f32", vN, init=vM)
    e("v_sub_f32 v%d, v%d, v%d" % (vAl, vM, vN))
    e("v_sub_f32 v%d, v%d, v%d" % (vU, vU, vN))
    e("v_sub_f32 v%d, v%d, v%d" % (vU + 1, vU + 1, vN))
    for r in (vAl, vU, vU + 1): e("v_mul_f32 v%d, s%d, v%d" % (r, sLog2e, r))
    for r in (vAl, vU, vU + 1): e("v_exp_f32 v%d, v%d" % (r, r))
    e("v_mov_b32 v%d, v%d" % (vM, vN))
    e("v_fma_f32 v%d, v%d, v%d, v%d" % (vL, vL, vAl, vU))
    e("v_add_f32 v%d, v%d, v%d" % (vL, vL, vU + 1))
    for k in range(4): e("v_mul_f32 v%d, v%d, v%d" % (vO + k, vO + k, vAl))
    e("v_cvt_pk_bf16_f32 v%d, v%d, v%d" % (vU, vU, vU))
    e("v_cvt_pk_bf16_f32 v%d, v%d, v%d" % (vU + 1, vU + 1, vU + 1))
    for i in range(8):
        buildB(i & 1, vU + (i >> 2), 4 * BANK_OF[i & 3])
        e("s_waitcnt vmcnt(%d)" % (ring - 1))
        sv = slot(8 + i) if ring == 16 else slot(i)
        mfma(vO, i & 1, sv)
        kv_load(1 if ring == 16 else 0, i, sv)
    e("s_add_u32 s6, s%d, 16" % sSeq); e("s_cmp_eq_u32 s6, s%d" % sLimO); e("s_cbranch_scc0 L_nosig")
    exec_one()
    e("ds_write_b32 v%d, v%d offset:%d" % (vZ, vOne, C3))
    exec_all()
    e("L_nosig:")
    e("s_cmp_eq_u32 s%d, 4" % sItc); e("s_cbranch_scc0 L_nosig2")
    exec_one()
    e("ds_write_b32 v%d, v%d offset:%d" % (vZ, vOne, C6))
    exec_all()
    e("L_nosig2:")
    e("s_cmp_eq_u32 s%d, 1" % sCurF); e("s_cbranch_scc1 L_fin")
    e("L_back:")
    e("s_cmp_ge_u32 s%d, %d" % (sNxt, INV)); e("s_cbranch_scc1 L_fin")
    e("s_cmp_lt_u32 s%d, 128" % sNxt); e("s_cbranch_scc1 L_loop")
    e("s_nop 7")
    for k in range(4): e("v_mov_b32 v%d, v%d" % (vSave + k, vO + k))
    for k in range(4): e("v_mov_b32 v%d, v%d" % (vSave + 4 + k, vQ + k))
    e("v_mov_b32 v%d, v%d" % (vSave + 8, vM)); e("v_mov_b32 v%d, v%d" % (vSave + 9, vL))
    lds_spin(C7, 1, "L_q2")
    e("ds_read_b128 %s, v%d offset:%d" % (vr(vQ), vR16, QB2))
    e("v_mov_b32 v%d, 0xff7fffff" % vM); e("v_mov_b32 v%d, 0" % vL)
    for k in range(4): e("v_mov_b32 v%d, 0" % (vO + k))
    e("s_mov_b32 s%d, 1" % sCurF)
    e("s_waitcnt lgkmcnt(0)")
    e("s_branch L_loop")

    e("L_other:")
    e("s_cmp_ge_u32 s2, %d" % NU); e("s_cbranch_scc1 L_wait")
    e("s_cmp_lg_u32 s%d, 15" % sW); e("s_cbranch_scc1 L_noq")
    e("v_lshlrev_b32 v%d, 2, v0" % vT1)
    e("ds_read_b32 v%d, v%d offset:%d" % (vTk, vT1, QB))
    e("s_waitcnt lgkmcnt(0)")
    e("buffer_store_dword v%d, v%d, %s, s%d offen offset:256 sc1" % (vTk, vT1, srd(sWS), sCB))
    e("v_mov_b32 v%d, %d" % (vT1, QCNT))
    e("s_waitcnt vmcnt(0)")
    exec_one()
    e("buffer_atomic_add v%d, v%d, %s, 0 offen" % (vOne, vT1, srd(sDBG)))
    exec_all()
    e("L_noq:")
    e("s_setprio %d" % prio)
    e("s_sub_u32 s%d, s%d, 4" % (sJ, sW))
    vXB = 40
    FA = 48
    vXB = 32; FA = 40; vAd = 56
    e("s_mul_i32 s6, s%d, 48" % sJ)
    e("v_add_u32 v%d, s6, v%d" % (vT1, vG))
    e("v_mul_u32_u24 v%d, %d, v%d" % (vT1, 128 if fake else 9216, vT1))
    e("v_and_b32 v58, 0x70, v%d" % vR16)
    e("s_mul_i32 s6, s2, 73728" if fake else "s_lshl_b32 s6, s2, 7")
    e("v_add3_u32 v%d, v%d, v58, s6" % (vT1, vT1))
    e("v_cmp_gt_u32 vcc, 128, v%d" % vR16)
    e("v_mov_b32 v58, s%d" % pWU); e("v_mov_b32 v59, s%d" % pWG)
    e("v_cndmask_b32 v%d, v58, v59, vcc" % vAd)
    e("v_mov_b32 v58, s%d" % (pWU + 1)); e("v_mov_b32 v59, s%d" % (pWG + 1))
    e("v_cndmask_b32 v%d, v58, v59, vcc" % (vAd + 1))
    e("v_add_co_u32 v%d, vcc, v%d, v%d" % (vAd, vAd, vT1))
    e("s_nop 1")
    e("v_addc_co_u32 v%d, vcc, 0, v%d, vcc" % (vAd + 1, vAd + 1))
    e("s_waitcnt vmcnt(0)")
    for i in range(12):
        e(("global_load_dwordx4 %s, %s, off" + FF) % (vr(slot(i)), vr(vAd, 2)))
        if i < 11:
            e("v_add_co_u32 v%d, vcc, %s, v%d" % (vAd, "0x200" if fake else "0x9000", vAd))
            e("s_nop 1")
            e("v_addc_co_u32 v%d, vcc, 0, v%d, vcc" % (vAd + 1, vAd + 1))
    e("v_lshrrev_b32 v%d, 4, v%d" % (vT1, vR16))
    e("v_min_u32 v%d, 11, v%d" % (vT1, vT1))
    e("v_lshl_add_u32 v%d, v%d, 2, v%d" % (vT1, vT1, vG))
    e("s_mul_i32 s6, s%d, 48" % sJ)
    e("v_add_u32 v%d, s6, v%d" % (vT1, vT1))
    e("v_lshlrev_b32 v%d, 1, v%d" % (vT1, vT1))
    for b in range(8):
        e("ds_read_u16 v%d, v%d offset:%d" % (vXB + b, vT1, XS + 1152 * b))
    e("s_waitcnt lgkmcnt(0)")
    for b in range(8):
        e("v_lshl_or_b32 v%d, v%d, 16, v%d" % (vXB + b, vXB + b, vXB + b))
    e("v_mul_u32_u24 v%d, 1152, v%d" % (vW, vG))
    e("s_lshl_b32 s6, s%d, 8" % sJ)
    e("v_add3_u32 v%d, v%d, v%d, s6" % (vW, vW, vR16))
    for i in range(12):
        e("s_waitcnt vmcnt(%d)" % (11 - i))
        for p in range(4):
            buildB2(p & 1, vXB + 2 * p, vXB + 2 * p + 1, i)
            mfma(FA + 4 * p, p & 1, slot(i), first=(i == 0))
    e("s_cmp_ge_u32 s%d, 5" % sJ); e("s_cbranch_scc1 L_nodn")
    for i in range(16):
        if i: e("s_mov_b32 s%d, %d" % (sTmp, 4608 * i))
        e(("buffer_load_dwordx4 %s, v%d, %s, %s offen" + FF) % (vr(slot(i)), vW, srd(sWD), ("s%d" % sTmp) if i else "0"))
    e("L_nodn:")
    e("s_lshl_b32 s6, s%d, 12" % sJ)
    e("v_add_u32 v%d, s6, v%d" % (vT1, vKV))
    for p in range(4):
        e("ds_write_b128 v%d, %s offset:%d" % (vT1, vr(FA + 4 * p), GP + 1024 * p))
    lds_signal(C1)
    e("s_cmp_ge_u32 s%d, 8" % sJ); e("s_cbranch_scc1 L_ffn_end")
    lds_spin(C1, 12, "L_spin1")
    e("s_lshr_b32 s6, s%d, 1" % sJ); e("s_lshl_b32 s6, s6, 10")
    e("s_and_b32 s7, s%d, 1" % sJ); e("s_lshl_b32 s7, s7, 9"); e("s_add_u32 s6, s6, s7")
    e("v_bfe_u32 v%d, v0, 2, 1" % vT1)
    e("v_lshlrev_b32 v%d, 8, v%d" % (vT1, vT1))
    e("v_lshrrev_b32 v58, 3, v0")
    e("v_lshl_add_u32 v%d, v58, 4, v%d" % (vT1, vT1))
    e("v_and_b32 v58, 3, v0")
    e("v_lshl_add_u32 v%d, v58, 2, v%d" % (vT1, vT1))
    e("v_add_u32 v%d, s6, v%d" % (vT1, vT1))
    e("v_add_u32 v%d, 0x%x, v%d" % (vT1, GP, vT1))
    for m in range(2):
        for w in range(12):
            e("ds_read_b32 v%d, v%d offset:%d" % (32 + 12 * m + w, vT1, 4096 * w + 128 * m))
    e("s_waitcnt lgkmcnt(0)")
    for m in range(2):
        b0 = 32 + 12 * m
        for w in range(4): e("v_add_f32 v%d, v%d, v%d" % (b0 + w, b0 + w, b0 + 8 + w))
        for st in (4, 2, 1):
            for w in range(st): e("v_add_f32 v%d, v%d, v%d" % (b0 + w, b0 + w, b0 + w + st))
    g, u, y, t = 32, 44, 33, 34
    bf16r2(g, u, t)
    c0 = 0.7978845608028654; c1 = c0 * 0.044715
    e("s_mov_b32 s6, %s" % f32(c1)); e("v_mov_b32 v%d, %s" % (t, f32(c0)))
    e("v_mul_f32 v%d, v%d, v%d" % (y, g, g))
    e("v_fma_f32 v%d, v%d, s6, v%d" % (y, y, t))
    e("v_mul_f32 v%d, v%d, v%d" % (y, y, g))
    e("v_mul_f32 v%d, %s, v%d" % (y, f32(-2.0 * 1.4426950408889634), y))
    e("v_exp_f32 v%d, v%d" % (y, y))
    e("v_add_f32 v%d, 1.0, v%d" % (y, y))
    e("v_rcp_f32 v%d, v%d" % (y, y))
    e("v_mul_f32 v%d, v%d, v%d" % (y, y, g))
    bf16r(y)
    e("v_mul_f32 v%d, v%d, v%d" % (y, y, u))
    e("v_cvt_pk_bf16_f32 v%d, v%d, v%d" % (y, y, y))
    e("s_lshl_b32 s6, s%d, 7" % sJ)
    e("v_lshl_add_u32 v%d, v0, 1, s6" % vT1)
    e("ds_write_b16 v%d, v%d offset:%d" % (vT1, y, HB))
    lds_signal(C2)
    e("s_cmp_ge_u32 s%d, 5" % sJ); e("s_cbranch_scc1 L_ffn_end")
    lds_spin(C2, 8, "L_spin2")
    e("v_lshrrev_b32 v%d, 2, v%d" % (vT1, vR16))
    e("v_add_u32 v%d, v%d, v%d" % (vT1, vT1, vG))
    e("v_lshlrev_b32 v%d, 1, v%d" % (vT1, vT1))
    for b in range(8):
        e("ds_read_u16 v%d, v%d offset:%d" % (vXB + b, vT1, HB + 128 * b))
    e("s_waitcnt lgkmcnt(0)")
    for b in range(8):
        e("v_lshl_or_b32 v%d, v%d, 16, v%d" % (vXB + b, vXB + b, vXB + b))
    for i in range(16):
        e("s_waitcnt vmcnt(%d)" % (15 - i))
        for p in range(4):
            buildB2(p & 1, vXB + 2 * p, vXB + 2 * p + 1, i)
            mfma(FA + 4 * p, p & 1, slot(i), first=(i == 0))
    e("v_lshrrev_b32 v%d, 1, v%d" % (vT1, vG))
    e("v_mul_u32_u24 v%d, 9, v%d" % (vT1, vT1))
    e("v_lshrrev_b32 v58, 7, v%d" % vR16)
    e("v_add_u32 v%d, v%d, v58" % (vT1, vT1))
    e("s_lshl_b32 s6, s%d, 1" % sJ)
    e("v_add_u32 v%d, s6, v%d" % (vT1, vT1))
    e("v_mul_u32_u24 v%d, %d, v%d" % (vT1, NU * 256, vT1))
    e("v_and_b32 v58, 0x70, v%d" % vR16)
    e("v_lshl_add_u32 v%d, v58, 1, v%d" % (vT1, vT1))
    e("v_and_b32 v58, 1, v%d" % vG)
    e("v_lshl_add_u32 v%d, v58, 4, v%d" % (vT1, vT1))
    e("s_lshl_b32 s6, s2, 8"); e("s_add_u32 s6, s6, %d" % WS_B)
    e("s_cmp_eq_u32 s%d, 4" % sJ)
    e("s_cselect_b32 s36, 0x00ff00ff, -1")
    e("s_mov_b32 exec_lo, s36"); e("s_mov_b32 exec_hi, s36")
    for p in range(4):
        e("buffer_store_dwordx4 %s, v%d, %s, s6 offen sc1" % (vr(FA + 4 * p), vT1, srd(sWS)))
        if p < 3: e("s_add_u32 s6, s6, %d" % (18 * NU * 256))
    exec_all()
    e("v_mov_b32 v58, %d" % FCNT)
    e("s_waitcnt vmcnt(0)")
    exec_one()
    e("buffer_atomic_add v%d, v58, %s, 0 offen" % (vOne, srd(sDBG)))
    exec_all()
    e("L_ffn_end:")
    e("s_setprio 0")
    stamp(2)

    def gpoll(name, srdreg, voff_val, soff, target):
        e("v_mov_b32 v%d, %d" % (vT1, voff_val))
        e("%s:" % name)
        e("buffer_load_dword v%d, v%d, %s, %s offen sc1" % (vTk, vT1, srd(srdreg), soff))
        e("s_waitcnt vmcnt(0)")
        e("v_readfirstlane_b32 s7, v%d" % vTk)
        e("s_nop 3")
        e("s_cmp_ge_u32 s7, %s" % target)
        e("s_cbranch_scc1 %s_ok" % name)
        e("s_sleep 64")
        e("s_branch %s" % name)
        e("%s_ok:" % name)
    e("L_wait:")
    wos = [slot(k) for k in range(16)] + [52, 56, 44, 8]
    e("s_cmp_lg_u32 s%d, 4" % sW); e("s_cbranch_scc1 L_nocour")
    e("s_cmp_lt_u32 s2, %d" % NU); e("s_cbranch_scc1 L_bar1")
    e("s_setprio 2")
    lds_spin(C6, 1, "L_late6")
    gpoll("L_pq", sDBG, QCNT, "0", "%d" % NU)
    e("v_lshlrev_b32 v%d, 2, v0" % vT1)
    e("buffer_load_dword v%d, v%d, %s, s%d offen offset:256 sc1" % (vTk, vT1, srd(sWS), sCB))
    e("s_waitcnt vmcnt(0)")
    e("ds_write_b32 v%d, v%d offset:%d" % (vT1, vTk, QB2))
    e("s_waitcnt lgkmcnt(0)")
    exec_one()
    e("ds_write_b32 v%d, v%d offset:%d" % (vZ, vOne, C7))
    exec_all()
    lds_spin(C5, 4, "L_late5")
    for k in range(3):
        e("ds_read_b128 %s, v%d offset:%d" % (vr(slot(k)), vKV, FP + 1024 * k))
    e("s_add_u32 s6, s%d, s%d" % (sCB, sB2))
    e("s_waitcnt lgkmcnt(0)")
    e("buffer_store_dwordx4 %s, v%d, %s, s6 offen offset:1024 sc1" % (vr(slot(0)), vKV, srd(sWS)))
    e("buffer_store_dwordx4 %s, v%d, %s, s6 offen offset:2048 sc1" % (vr(slot(1)), vKV, srd(sWS)))
    e("s_mov_b64 exec, 15")
    e("buffer_store_dwordx4 %s, v%d, %s, s6 offen offset:3072 sc1" % (vr(slot(2)), vKV, srd(sWS)))
    e("s_waitcnt vmcnt(0)")
    exec_one()
    e("buffer_atomic_add v%d, v%d, %s, s%d offen" % (vOne, vZ, srd(sWS), sCB))
    exec_all()
    e("s_branch L_bar1")
    e("L_nocour:")
    e("s_cmp_lt_u32 s%d, 8" % sW); e("s_cbranch_scc1 L_bar1")
    e("s_waitcnt vmcnt(0) lgkmcnt(0)")
    e("s_cmp_lg_u32 s%d, 14" % sW); e("s_cbranch_scc1 L_nogate")
    for j in range(4):
        e("buffer_load_dwordx4 %s, v%d, %s, 0 offen offset:%d" % (vr(slot(j)), vKV, srd(sX if j < 2 else sGW), (j & 1) * 1024))
    e("s_waitcnt vmcnt(0)")
    acc = vAcc; x0, x1, g0, g1, pk = vAcc + 1, vAcc + 2, vAcc + 3, vAcc + 4, vAcc + 5
    e("v_mov_b32 v%d, 0" % acc)
    for p in (0, 1):
        for d in range(4):
            xs = slot(p) + d; gs = slot(2 + p) + d
            e("v_lshlrev_b32 v%d, 16, v%d" % (x0, xs)); e("v_and_b32 v%d, s%d, v%d" % (x1, sHi, xs))
            e("v_lshlrev_b32 v%d, 16, v%d" % (g0, gs)); e("v_and_b32 v%d, s%d, v%d" % (g1, sHi, gs))
            e("v_mul_f32 v%d, v%d, v%d" % (x0, x0, g0)); e("v_mul_f32 v%d, v%d, v%d" % (x1, x1, g1))
            bf16r2(x0, x1, pk)
            e("v_add_f32 v%d, v%d, v%d" % (acc, acc, x0)); e("v_add_f32 v%d, v%d, v%d" % (acc, acc, x1))
    row_allreduce("v_add_f32", [acc])
    cross_row("v_add_f32", acc)
    bf16r(acc)
    e("v_mul_f32 v%d, s%d, v%d" % (acc, sLog2e, acc))
    e("v_sub_f32 v%d, 0, v%d" % (acc, acc))
    e("v_exp_f32 v%d, v%d" % (acc, acc))
    e("v_add_f32 v%d, 1.0, v%d" % (acc, acc))
    e("v_rcp_f32 v%d, v%d" % (vAcc + 2, acc))
    bf16r(vAcc + 2)
    e("v_sub_f32 v%d, 1.0, v%d" % (vAcc + 3, vAcc + 2))
    bf16r(vAcc + 3)
    exec_one()
    e("ds_write_b64 v%d, %s offset:%d" % (vZ, vr(vAcc + 2, 2), GT))
    exec_all()
    e("L_nogate:")
    e("s_sub_u32 s7, s%d, 8" % sW); e("s_lshl_b32 s7, s7, 4")
    e("v_add_u32 v%d, s7, v%d" % (vW, vG))
    e("v_mul_u32_u24 v%d, 1152, v%d" % (vW, vW))
    e("v_add_u32 v%d, v%d, v%d" % (vW, vW, vR16))
    for i in range(4):
        if i: e("s_mov_b32 s%d, %d" % (sTmp, 4608 * i))
        for c in range(5):
            e(("buffer_load_dwordx4 %s, v%d, %s, %s offen offset:%d" + WF) % (vr(wos[5 * i + c]), vW, srd(sWO), ("s%d" % sTmp) if i else "0", c * 256))
    e("s_cmp_lg_u32 s%d, 15" % sW); e("s_cbranch_scc1 L_bar1")
    lds_spin(C3, 1, "L_late")
    e("s_setprio 2")
    gpoll("L_pf", sDBG, FCNT, "0", "%d" % (NU * 5))
    e("s_cmp_ge_u32 s2, %d" % NU); e("s_cbranch_scc1 L_nofp")
    gpoll("L_pd", sWS, 0, "s%d" % sCB, "s%d" % sNth)
    e("s_mul_i32 s6, s%d, 2112" % sNth)
    CQ = [24, 28, 32, 36, 40, 48, 20]
    e("s_add_u32 s7, s%d, 1024" % sCB); e("s_add_u32 s%d, s7, 4096" % sTmp)
    for k in range(7):
        e("buffer_load_dwordx4 %s, v%d, %s, s%d offen offset:%d sc1" % (vr(CQ[k]), vKV, srd(sWS), 7 if k < 4 else sTmp, 1024 * (k % 4)))
    e("s_waitcnt vmcnt(0)")
    for k in range(7):
        e("v_add_u32 v%d, %d, v%d" % (vT1, 1024 * k, vKV))
        e("v_cmp_gt_u32 vcc, s6, v%d" % vT1)
        e("s_and_saveexec_b64 s[44:45], vcc")
        e("s_cbranch_execz L_nf%d" % k)
        e("ds_write_b128 v%d, %s offset:%d" % (vT1, vr(CQ[k]), OP + 4 * 528))
        e("L_nf%d:" % k)
        exec_all()
    e("L_nofp:")
    e("s_setprio 0")
    stamp(3)
    e("s_branch L_bar1")

    e("L_fin:")
    e("s_nop 7")
    nst[0] = 4
    e("v_add_f32_dpp v%d, v%d, v%d row_ror:4 row_mask:0xf bank_mask:0xf" % (vL, vL, vL))
    e("v_add_f32_dpp v%d, v%d, v%d row_ror:8 row_mask:0xf bank_mask:0xf" % (vL, vL, vL))
    cross_row("v_add_f32", vL)
    e("s_mul_i32 s6, s%d, 528" % sW)
    e("s_mul_i32 s7, s%d, %d" % (sCurF, FP - OP)); e("s_add_u32 s6, s6, s7")
    e("v_add_u32 v%d, s6, v%d" % (vT1, vT0))
    exec_lo32()
    e("ds_write_b128 v%d, %s offset:%d" % (vT1, vr(vO), OP))
    e("s_mov_b32 exec_lo, 1")
    e("v_mov_b32 v%d, s6" % vT1)
    e("v_mov_b32 v%d, v%d" % (vX0, vM)); e("v_mov_b32 v%d, v%d" % (vX0 + 1, vL))
    e("ds_write_b64 v%d, %s offset:%d" % (vT1, vr(vX0, 2), OP + 512))
    e("s_cmp_eq_u32 s%d, 0" % sCurF); e("s_cbranch_scc1 L_fin2")
    e("s_waitcnt lgkmcnt(0)")
    e("ds_add_u32 v%d, v%d offset:%d" % (vZ, vOne, C5))
    exec_all()
    for k in range(4): e("v_mov_b32 v%d, v%d" % (vO + k, vSave + k))
    for k in range(4): e("v_mov_b32 v%d, v%d" % (vQ + k, vSave + 4 + k))
    e("v_mov_b32 v%d, v%d" % (vM, vSave + 8)); e("v_mov_b32 v%d, v%d" % (vL, vSave + 9))
    e("s_mov_b32 s%d, 0" % sCurF)
    e("s_nop 3")
    e("s_branch L_back")
    e("L_fin2:")
    exec_all()
    e("s_cmp_eq_u32 s62, 1"); e("s_cbranch_scc0 L_fin3")
    e("s_setprio 0")
    e("s_branch L_wait")
    e("L_fin3:")
    stamp()
    e("L_bar1:")
    barrier()
    stamp()
    e("s_cmp_lt_u32 s%d, 8" % sW); e("s_cbranch_scc1 L_bar2")
    vOc = vO
    mr, lr, mm = 12, 13, 14
    e("v_mul_u32_u24 v%d, 33, v%d" % (vT1, vR16))
    e("ds_read_b64 %s, v%d offset:%d" % (vr(mr, 2), vT1, OP + 512))
    e("v_lshl_add_u32 v%d, v%d, 2, v%d" % (vT1, vG, vT1))
    e("s_sub_u32 s6, s%d, 8" % sW); e("s_lshl_b32 s6, s6, 6")
    e("v_add_u32 v%d, s6, v%d" % (vT1, vT1))
    for i in range(4):
        e("ds_read_b32 v%d, v%d offset:%d" % (vOc + i, vT1, OP + 16 * i))
    e("s_waitcnt lgkmcnt(0)")
    e("v_mov_b32 v%d, v%d" % (mm, mr))
    row_allreduce("v_max_f32", [mm])
    e("v_sub_f32 v%d, v%d, v%d" % (mr, mr, mm))
    e("v_mul_f32 v%d, s%d, v%d" % (mr, sLog2e, mr))
    e("v_exp_f32 v%d, v%d" % (mr, mr))
    for r in [lr] + [vOc + i for i in range(4)]: e("v_mul_f32 v%d, v%d, v%d" % (r, r, mr))
    row_allreduce("v_add_f32", [lr] + [vOc + i for i in range(4)])
    e("v_rcp_f32 v%d, v%d" % (lr, lr))
    for i in range(4): e("v_mul_f32 v%d, v%d, v%d" % (vOc + i, vOc + i, lr))
    for i in range(4): e("v_cvt_pk_bf16_f32 v%d, v%d, v%d" % (vOc + i, vOc + i, vOc + i))
    e("s_waitcnt vmcnt(0)")
    OA = [32, 36, 40, 48, 12]
    for i in range(4):
        buildB(i & 1, vOc + i)
        for c in range(5):
            mfma(OA[c], i & 1, wos[5 * i + c], first=(i == 0))
    e("s_sub_u32 s6, s%d, 8" % sW); e("s_mul_i32 s6, s6, 2560")
    e("v_add_u32 v%d, s6, v%d" % (vT1, vT0))
    exec_lo32()
    for c in range(5):
        e("ds_write_b128 v%d, %s offset:%d" % (vT1, vr(OA[c]), AP + 512 * c))
    exec_all()
    e("L_bar2:")
    barrier()
    stamp()
    e("s_cmp_ge_u32 s%d, 9" % sW); e("s_cbranch_scc1 %s" % ("L_st" if stamps else "L_done"))
    e("s_lshl_b32 s6, s%d, 8" % sW)
    e("v_lshl_add_u32 v%d, v0, 2, s6" % vT1)
    e("v_mov_b32 v%d, 0" % vW)
    for w in range(8):
        e("ds_read_b32 v%d, v%d offset:%d" % (vAcc + w, vT1, AP + 2560 * w))
    e("ds_read_b64 %s, v%d offset:%d" % (vr(vQ, 2), vW, GT))
    e("v_lshlrev_b32 v%d, 2, v0" % vT1)
    e("v_mov_b32 v%d, 1" % vXc); e("v_mov_b32 v%d, 0" % vW)
    e("s_waitcnt lgkmcnt(0)")
    for st in (4, 2, 1):
        for w in range(st):
            e("v_add_f32 v%d, v%d, v%d" % (vAcc + w, vAcc + w, vAcc + w + st))
    e("buffer_store_dword v%d, v%d, %s, s%d offen sc1" % (vAcc, vT1, srd(sWS), sWsOff))
    e("s_waitcnt vmcnt(0)")
    stamp()
    exec_one()
    e("ds_add_rtn_u32 v%d, v%d, v%d offset:%d" % (vTk, vW, vXc, C8))
    e("s_waitcnt lgkmcnt(0)")
    e("v_readfirstlane_b32 s7, v%d" % vTk)
    e("s_nop 3")
    e("s_cmp_lg_u32 s7, 8"); e("s_cbranch_scc1 L_arw")
    e("s_lshl_b32 s6, s%d, 4" % sBt); e("v_mov_b32 v%d, s6" % vTk)
    e("buffer_atomic_add v%d, v%d, %s, 0 offen sc0" % (vXc, vTk, srd(sDBG)))
    e("s_waitcnt vmcnt(0)")
    e("v_add_u32 v%d, 1, v%d" % (vXc, vXc))
    e("ds_write_b32 v%d, v%d offset:%d" % (vW, vXc, C9))
    e("L_arw:")
    e("ds_read_b32 v%d, v%d offset:%d" % (vTk, vW, C9))
    e("s_waitcnt lgkmcnt(0)")
    e("v_readfirstlane_b32 s%d, v%d" % (sA, vTk))
    e("s_nop 3")
    e("s_cmp_eq_u32 s%d, 0" % sA); e("s_cbranch_scc1 L_arw")
    exec_all()
    stamp()
    e("s_cmp_lg_u32 s%d, 32" % sA); e("s_cbranch_scc1 %s" % ("L_st" if stamps else "L_done"))
    FB = 24
    e("s_lshl_b32 s6, s%d, 13" % sC)
    e("s_mul_i32 s%d, s%d, %d" % (sA, sC, NU * 256)); e("s_add_u32 s%d, s%d, %d" % (sA, sA, WS_B))
    n = 0
    for base, cnt in (("s6", 8), ("s%d" % sA, 18)):
        for i in range(cnt):
            if i % 4 == 0:
                e("s_add_u32 s7, %s, %d" % (base, (i // 4) * 4096))
            e("buffer_load_dwordx4 %s, v%d, %s, s7 offen offset:%d sc1" % (vr(FB + 4 * n), vKV, srd(sWS), (i % 4) * 1024))
            n += 1
    def tree(b0, cnt):
        regs = [b0 + 4 * i for i in range(cnt)]
        while len(regs) > 1:
            half = (len(regs) + 1) // 2
            for i in range(len(regs) - half):
                for d in range(4):
                    e("v_add_f32 v%d, v%d, v%d" % (regs[i] + d, regs[i] + d, regs[half + i] + d))
            regs = regs[:half]
        e("v_permlane32_swap_b32 v%d, v%d" % (b0, b0 + 2))
        e("v_permlane32_swap_b32 v%d, v%d" % (b0 + 1, b0 + 3))
        e("v_add_f32 v%d, v%d, v%d" % (b0, b0, b0 + 2))
        e("v_add_f32 v%d, v%d, v%d" % (b0 + 1, b0 + 1, b0 + 3))
        e("v_permlane16_swap_b32 v%d, v%d" % (b0, b0 + 1))
        e("v_add_f32 v%d, v%d, v%d" % (b0, b0, b0 + 1))
    e("s_waitcnt vmcnt(18)")
    tree(FB, 8)
    e("s_waitcnt vmcnt(0)")
    tree(FB + 32, 18)
    A, Bq = FB, FB + 32
    bf16r2(A, Bq, vT1)
    e("v_mul_f32 v%d, v%d, v%d" % (A, A, vQ)); e("v_mul_f32 v%d, v%d, v%d" % (Bq, Bq, vQ + 1))
    bf16r2(A, Bq, vT1)
    e("v_add_f32 v%d, v%d, v%d" % (A, A, Bq))
    e("v_cvt_pk_bf16_f32 v%d, v%d, v%d" % (A, A, A))
    e("s_mul_i32 s6, s%d, 576" % sBt); e("s_lshl_b32 s7, s%d, 6" % sW); e("s_add_u32 s6, s6, s7")
    e("v_lshrrev_b32 v%d, 2, v%d" % (vT1, vR16))
    e("v_add3_u32 v%d, v%d, v%d, s6" % (vT1, vT1, vG))
    e("v_lshlrev_b32 v%d, 1, v%d" % (vT1, vT1))
    e("buffer_store_short v%d, v%d, %s, 0 offen" % (A, vT1, srd(sOUT)))
    if stamps:
        e("s_waitcnt vmcnt(0)")
        stamp()
        e("L_st:")
        e("s_lshl_b32 s6, s2, 4"); e("s_add_u32 s6, s6, s%d" % sW); e("s_lshl_b32 s6, s6, 8"); e("s_add_u32 s6, s6, 0x800000")
        e("v_lshlrev_b32 v%d, 2, v0" % vT1)
        e("s_nop 4")
        e("buffer_store_dword v%d, v%d, %s, s6 offen" % (vSt, vT1, srd(sWS)))
    e("L_done:")
    e("s_endpgm")

    body = a.finish()
    assert LDS_USED <= LDS_BYTES and AP + 2560 * 7 < 65536 and GP + 3072 < 65536
    out = [HDR.rstrip(), "; @launch grid=(256,1,1) block=(1024,1,1) lds=%d" % LDS_BYTES,
           '.amdgcn_target "amdgcn-amd-amdhsa--gfx950"', ".text", ".globl %s" % KN, ".p2align 8",
           ".type %s,@function" % KN, "%s:" % KN] + body + [
           '.section .rodata,"a"', ".p2align 6", ".amdhsa_kernel %s" % KN,
           "  .amdhsa_next_free_vgpr 128", "  .amdhsa_next_free_sgpr 102", "  .amdhsa_accum_offset 128",
           "  .amdhsa_group_segment_fixed_size 0", "  .amdhsa_kernarg_size 104", "  .amdhsa_user_sgpr_count 2",
           "  .amdhsa_user_sgpr_kernarg_segment_ptr 1", "  .amdhsa_system_sgpr_workgroup_id_x 1", ".end_amdhsa_kernel"]
    return "\n".join(out) + "\n"

if __name__ == "__main__":
    dst = sys.argv[1]
    kw = {}
    for x in sys.argv[2:]:
        k, v = x.split("=")
        kw[k] = int(v)
    open(dst, "w").write(gen(**kw))
    print("wrote", dst, "LDS", LDS_USED, "GP", GP, "AP", AP)
```

```python
import sys, struct
from asmlib import Asm
REF = open("gated_mix__mha_block_cached__glu_gated_geglu__decode.s.ref").read()
HDR = REF.split("; Override launch")[0]
KN = "gated_mix__mha_block_cached__glu_gated_geglu__decode_kernel"

def f32(x):
    return "0x%08x" % struct.unpack("<I", struct.pack("<f", x))[0]

vLane, vKV, vR16, vG = 0, 1, 2, 3
vMask = 4
vQ = 8
vXc, vM, vL, vGate, vOmg, vW, vT0, vT1 = 12, 13, 14, 15, 16, 17, 18, 19
vO = 20
vB = 24
vAcc = 32
vS = 32
vT = 40
vU = 44
vN, vAl = 46, 47
vX0 = 48
RING0 = 56
sW, sBt, sH = 3, 4, 5
sK, sV, sWQ, sWG, sWU, sWD, sWO = 8, 12, 16, 20, 24, 28, 32
pX, pK, pV, pWQ, pWO, pBX, pWG, pWU, pWD, pGW, pOUT, pDBG, pWS = 36, 38, 40, 42, 44, 46, 48, 50, 52, 54, 56, 58, 60
sX, sGW, sWS, sOUT, sDBG = 64, 68, 72, 76, 80
sKV, sOff, sTmp = 84, 85, 86
sR = 88
sA, sB2, sC = 92, 93, 94
sScale, sLog2e = 96, 97
sWsOff = 98
sHi = 99
QP = 0
QB = 8192
C8 = QB + 256
C9 = QB + 260
HB = QB + 512
OP = HB + 512
ML = OP + 8448
GU = ML + 128
DP = GU + 24576
AP = DP + 40960
LDS_BYTES = AP + 40960

def srd(x):
    return "s[%d:%d]" % (x, x + 3)
def vr(x, n=4):
    return "v[%d:%d]" % (x, x + n - 1)

class Item:
    def __init__(self, issue, consume=None, pre=None, post=None, defer=False):
        self.issue = issue; self.consume = consume; self.pre = pre; self.post = post; self.defer = defer
        self.op = None

def gen(R=18, stamps=False, dbg=False, wnt=0, noffn=0, nomap=0, pat=0):
    WF = ' nt' if wnt else ''
    a = Asm(); e = a.e
    NB = 8
    def make_srd(d, p, off_sgpr, size):
        if off_sgpr is None:
            e("s_mov_b32 s%d, s%d" % (d, p)); e("s_and_b32 s%d, s%d, 0xffff" % (d + 1, p + 1))
        else:
            e("s_add_u32 s%d, s%d, s%d" % (d, p, off_sgpr)); e("s_addc_u32 s%d, s%d, 0" % (d + 1, p + 1))
            e("s_and_b32 s%d, s%d, 0xffff" % (d + 1, d + 1))
        e("s_mov_b32 s%d, 0x%x" % (d + 2, size)); e("s_mov_b32 s%d, 0x20000" % (d + 3))
    def exec_lo32():
        e("s_mov_b32 exec_lo, -1"); e("s_mov_b32 exec_hi, 0")
    def exec_all():
        e("s_mov_b64 exec, -1")
    def bf16r2(x, y, t):
        e("v_cvt_pk_bf16_f32 v%d, v%d, v%d" % (t, x, y))
        e("v_lshlrev_b32 v%d, 16, v%d" % (x, t))
        e("v_and_b32 v%d, s%d, v%d" % (y, sHi, t))
    def bf16r(x):
        e("v_cvt_pk_bf16_f32 v%d, v%d, v%d" % (x, x, x))
        e("v_lshlrev_b32 v%d, 16, v%d" % (x, x))
    def row_allreduce(op, regs):
        for sh in (1, 2, 4, 8):
            for r in regs:
                e("%s_dpp v%d, v%d, v%d row_ror:%d row_mask:0xf bank_mask:0xf" % (op, r, r, r, sh))
    def cross_row(op, x, init=None):
        for k in range(4):
            e("v_readlane_b32 s%d, v%d, %d" % (sR + k, x, 16 * k))
        if init is None:
            e("v_mov_b32 v%d, s%d" % (x, sR))
            ks = (1, 2, 3)
        else:
            e("%s v%d, s%d, v%d" % (op, x, sR, init))
            ks = (1, 2, 3)
        for k in ks:
            e("%s v%d, s%d, v%d" % (op, x, sR + k, x))
    def buildB(bset, coef, lane=None):
        for w in range(4):
            if lane is None:
                e("v_and_b32 v%d, v%d, v%d" % (vB + 4 * bset + w, coef, vMask + w))
            else:
                e("v_and_b32_dpp v%d, v%d, v%d row_newbcast:%d row_mask:0xf bank_mask:0xf" % (vB + 4 * bset + w, coef, vMask + w, lane))
    def mfma(acc, bset, slot, first=False):
        e("v_mfma_f32_16x16x32_bf16 %s, %s, %s, %s" % (vr(acc), vr(vB + 4 * bset), vr(slot), "0" if first else vr(acc)))
    def barrier():
        e("s_waitcnt lgkmcnt(0)"); e("s_barrier")
    lab = [0]
    nst = [0]
    def stamp():
        if not stamps: return
        k = nst[0]; nst[0] += 1
        e("s_memrealtime s[100:101]")
        e("s_waitcnt lgkmcnt(0)")
        e("v_writelane_b32 v54, s100, %d" % k)
    def newlabel(s):
        lab[0] += 1
        return "L_%s_%d" % (s, lab[0])

    e("s_cmp_ge_u32 s2, 256"); e("s_cbranch_scc1 L_done")
    e("s_load_dwordx16 s[36:51], s[0:1], 0")
    e("s_load_dwordx8 s[52:59], s[0:1], 64")
    e("s_load_dwordx2 s[60:61], s[0:1], 96")
    e("v_lshrrev_b32 v%d, 6, v0" % vW)
    e("v_and_b32 v0, 63, v0")
    e("v_readfirstlane_b32 s%d, v%d" % (sW, vW))
    e("s_and_b32 s6, s2, 7"); e("s_lshr_b32 s7, s2, 3"); e("s_and_b32 s%d, s7, 3" % sH)
    e("s_lshl_b32 s6, s6, 2"); e("s_add_u32 s%d, s%d, s6" % (sH, sH)); e("s_lshr_b32 s%d, s7, 2" % sBt)
    if nomap:
        e("s_and_b32 s%d, s2, 31" % sH); e("s_lshr_b32 s%d, s2, 5" % sBt)
    e("s_mov_b32 s%d, %s" % (sScale, f32(128 ** -0.5)))
    e("s_mov_b32 s%d, %s" % (sLog2e, f32(1.4426950408889634)))
    e("s_mov_b32 s%d, 0xffff0000" % sHi)
    e("v_and_b32 v%d, 15, v0" % vT0)
    e("v_lshrrev_b32 v%d, 4, v0" % vG)
    e("v_lshlrev_b32 v%d, 4, v%d" % (vR16, vT0))
    e("v_lshlrev_b32 v%d, 4, v0" % vKV)
    e("s_lshl_b32 s6, s%d, %d" % (sW, {0: 13, 1: 16, 2: 14, 3: 15}[pat]))
    e("v_add_u32 v%d, s6, v%d" % (vKV, vKV))
    e("s_mul_i32 s7, s%d, 36" % sW)
    e("v_min_u32 v%d, 8, v%d" % (vT1, vT0))
    e("v_lshl_add_u32 v%d, v%d, 2, v%d" % (vT1, vT1, vG))
    e("v_add_u32 v%d, s7, v%d" % (vT1, vT1))
    e("v_lshlrev_b32 v%d, 1, v%d" % (vT1, vT1))
    e("v_add_u32 v%d, s7, v%d" % (vW, vG))
    e("v_lshlrev_b32 v%d, 13, v%d" % (vW, vW))
    e("v_add_u32 v%d, v%d, v%d" % (vW, vW, vR16))
    e("s_lshl_b32 s%d, s%d, 5" % (sKV, sBt)); e("s_add_u32 s%d, s%d, s%d" % (sKV, sKV, sH)); e("s_lshl_b32 s%d, s%d, 20" % (sKV, sKV))
    e("s_mul_i32 s%d, s%d, 1152" % (sA, sBt))
    e("s_lshl_b32 s%d, s%d, 8" % (sB2, sH))
    e("s_waitcnt lgkmcnt(0)")
    stamp()
    make_srd(sX, pX, sA, 1152)
    opx = a.vmem("buffer_load_ushort v%d, v%d, %s, 0 offen" % (vXc, vT1, srd(sX)))
    make_srd(sWQ, pWQ, sB2, 575 * 8192 + 256)
    make_srd(sK, pK, None, 0x10000000)
    make_srd(sV, pV, None, 0x10000000)

    late = []

    stream = []
    state = {"soff": None, "wtype": "wq"}
    def soff(val):
        if val == 0:
            return "0"
        if state["soff"] != val:
            e("s_mov_b32 s%d, 0x%x" % (sTmp, val)); state["soff"] = val
        return "s%d" % sTmp
    def kvsoff(val):
        if state.get("kv") != val:
            e("s_add_u32 s%d, s%d, 0x%x" % (sOff, sKV, val)); state["kv"] = val
        return "s%d" % sOff

    def wq_item(i):
        def issue(s):
            return a.vmem(("buffer_load_dwordx4 %s, v%d, %s, %s offen" + WF) % (vr(s), vW, srd(sWQ), soff(i * 32768)))
        def pre():
            if i == 0:
                a.wait_vm(opx)
                e("v_lshl_or_b32 v%d, v%d, 16, v%d" % (vXc, vXc, vXc))
            buildB(i & 1, vXc, i)
        def consume(s):
            mfma(vAcc, i & 1, s, first=(i == 0))
        def post():
            if i != 8: return
            e("s_lshl_b32 s6, s%d, 9" % sW)
            e("v_lshlrev_b32 v%d, 1, v%d" % (vT0, vR16))
            e("v_lshl_add_u32 v%d, v%d, 4, v%d" % (vT0, vG, vT0))
            e("v_add_u32 v%d, s6, v%d" % (vT1, vT0))
            exec_lo32()
            e("ds_write_b128 v%d, %s offset:%d" % (vT1, vr(vAcc), QP))
            exec_all()
            barrier()
            L = newlabel("qred")
            e("s_cmp_ge_u32 s%d, 2" % sW); e("s_cbranch_scc1 %s" % L)
            e("s_lshl_b32 s6, s%d, 6" % sW)
            e("v_add_u32 v%d, s6, v0" % vT1)
            e("v_lshlrev_b32 v%d, 2, v%d" % (vX0, vT1))
            for w in range(16):
                e("ds_read_b32 v%d, v%d offset:%d" % (vAcc + w, vX0, QP + 512 * w))
            e("s_waitcnt lgkmcnt(0)")
            for st in (8, 4, 2, 1):
                for w in range(st):
                    e("v_add_f32 v%d, v%d, v%d" % (vAcc + w, vAcc + w, vAcc + w + st))
            e("v_cvt_pk_bf16_f32 v%d, v%d, v%d" % (vAcc, vAcc, vAcc))
            e("v_lshlrev_b32 v%d, 1, v%d" % (vT1, vT1))
            e("ds_write_b16 v%d, v%d offset:%d" % (vT1, vAcc, QB))
            e("%s:" % L)
            barrier()
            e("ds_read_b128 %s, v%d offset:%d" % (vr(vQ), vR16, QB))
            e("s_waitcnt lgkmcnt(0)")
            if dbg:
                e("buffer_store_dwordx4 %s, v%d, %s, s95 offen" % (vr(vQ), vR16, srd(sWS)))
            stamp()
        return Item(issue, consume, pre, post)
    for i in range(9):
        stream.append(wq_item(i))

    BANK_OF = {0: 0, 1: 2, 2: 1, 3: 3}
    def boff(t):
        return {0: t * 131072, 1: t * 8192, 2: (t >> 1) * 262144 + (t & 1) * 8192, 3: (t >> 2) * 524288 + (t & 3) * 8192}[pat]
    def k_item(t, i):
        def issue(s):
            so = kvsoff(boff(t) + (i // 4) * 4096)
            return a.vmem("buffer_load_dwordx4 %s, v%d, %s, %s offen offset:%d nt" % (vr(s), vKV, srd(sK), so, (i % 4) * 1024))
        def consume(s):
            e("v_dot2_f32_bf16 v%d, v%d, v%d, 0" % (vS + i, s, vQ))
            for d in (1, 2, 3):
                e("v_dot2_f32_bf16 v%d, v%d, v%d, v%d" % (vS + i, s + d, vQ + d, vS + i))
        def post():
            if i != 7: return
            for half in (0, 1):
                s0 = vS + 4 * half; t0 = vT + 2 * half
                e("v_add_f32_dpp v%d, v%d, v%d row_ror:8 row_mask:0xf bank_mask:0x3" % (t0, s0, s0))
                e("v_add_f32_dpp v%d, v%d, v%d row_ror:8 row_mask:0xf bank_mask:0xc" % (t0, s0 + 1, s0 + 1))
                e("v_add_f32_dpp v%d, v%d, v%d row_ror:8 row_mask:0xf bank_mask:0x3" % (t0 + 1, s0 + 2, s0 + 2))
                e("v_add_f32_dpp v%d, v%d, v%d row_ror:8 row_mask:0xf bank_mask:0xc" % (t0 + 1, s0 + 3, s0 + 3))
            for half in (0, 1):
                t0 = vT + 2 * half
                e("v_add_f32_dpp v%d, v%d, v%d row_half_mirror row_mask:0xf bank_mask:0x5" % (vU + half, t0, t0))
                e("v_add_f32_dpp v%d, v%d, v%d row_half_mirror row_mask:0xf bank_mask:0xa" % (vU + half, t0 + 1, t0 + 1))
            for qp in ("[1,0,3,2]", "[2,3,0,1]"):
                for half in (0, 1):
                    e("v_add_f32_dpp v%d, v%d, v%d quad_perm:%s row_mask:0xf bank_mask:0xf" % (vU + half, vU + half, vU + half, qp))
            bf16r2(vU, vU + 1, vT)
            e("v_mul_f32 v%d, s%d, v%d" % (vU, sScale, vU)); e("v_mul_f32 v%d, s%d, v%d" % (vU + 1, sScale, vU + 1))
            bf16r2(vU, vU + 1, vT)
            e("v_max_f32 v%d, v%d, v%d" % (vN, vU, vU + 1))
            e("v_max_f32_dpp v%d, v%d, v%d row_ror:4 row_mask:0xf bank_mask:0xf" % (vN, vN, vN))
            e("v_max_f32_dpp v%d, v%d, v%d row_ror:8 row_mask:0xf bank_mask:0xf" % (vN, vN, vN))
            cross_row("v_max_f32", vN, init=vM)
            e("v_sub_f32 v%d, v%d, v%d" % (vAl, vM, vN))
            e("v_sub_f32 v%d, v%d, v%d" % (vU, vU, vN))
            e("v_sub_f32 v%d, v%d, v%d" % (vU + 1, vU + 1, vN))
            for r in (vAl, vU, vU + 1):
                e("v_mul_f32 v%d, s%d, v%d" % (r, sLog2e, r))
            for r in (vAl, vU, vU + 1):
                e("v_exp_f32 v%d, v%d" % (r, r))
            e("v_mov_b32 v%d, v%d" % (vM, vN))
            e("v_fma_f32 v%d, v%d, v%d, v%d" % (vL, vL, vAl, vU))
            e("v_add_f32 v%d, v%d, v%d" % (vL, vL, vU + 1))
            for k in range(4):
                e("v_mul_f32 v%d, v%d, v%d" % (vO + k, vO + k, vAl))
            e("v_cvt_pk_bf16_f32 v%d, v%d, v%d" % (vU, vU, vU))
            e("v_cvt_pk_bf16_f32 v%d, v%d, v%d" % (vU + 1, vU + 1, vU + 1))
            stamp()
        return Item(issue, consume, None, post)
    def v_item(t, i):
        def issue(s):
            so = kvsoff(boff(t) + (i // 4) * 4096)
            return a.vmem("buffer_load_dwordx4 %s, v%d, %s, %s offen offset:%d nt" % (vr(s), vKV, srd(sV), so, (i % 4) * 1024))
        def pre():
            buildB(i & 1, vU + (i >> 2), 4 * BANK_OF[i & 3])
        def consume(s):
            mfma(vO, i & 1, s)
        return Item(issue, consume, pre, None)
    def add_kv(t):
        for i in range(8): stream.append(k_item(t, i))
        for i in range(8): stream.append(v_item(t, i))

    gslots = []
    def gv_item(j):
        def issue(s):
            if j == 0:
                e("v_lshlrev_b32 v%d, 4, v0" % vW)
            return a.vmem("buffer_load_dwordx4 %s, v%d, %s, 0 offen offset:%d" % (vr(s), vW, srd(sX if j < 2 else sGW), (j & 1) * 1024))
        def consume(s):
            gslots.append(s)
            if j != 3: return
            acc = vAcc; x0, x1, g0, g1, pk = vAcc + 1, vAcc + 2, vAcc + 3, vAcc + 4, vAcc + 5
            e("v_mov_b32 v%d, 0" % acc)
            for p in (0, 1):
                for d in range(4):
                    xs = gslots[p] + d; gs = gslots[2 + p] + d
                    e("v_lshlrev_b32 v%d, 16, v%d" % (x0, xs)); e("v_and_b32 v%d, s%d, v%d" % (x1, sHi, xs))
                    e("v_lshlrev_b32 v%d, 16, v%d" % (g0, gs)); e("v_and_b32 v%d, s%d, v%d" % (g1, sHi, gs))
                    e("v_mul_f32 v%d, v%d, v%d" % (x0, x0, g0)); e("v_mul_f32 v%d, v%d, v%d" % (x1, x1, g1))
                    bf16r2(x0, x1, pk)
                    e("v_add_f32 v%d, v%d, v%d" % (acc, acc, x0)); e("v_add_f32 v%d, v%d, v%d" % (acc, acc, x1))
            row_allreduce("v_add_f32", [acc])
            cross_row("v_add_f32", acc)
            bf16r(acc)
            e("v_mul_f32 v%d, s%d, v%d" % (acc, sLog2e, acc))
            e("v_sub_f32 v%d, 0, v%d" % (acc, acc))
            e("v_exp_f32 v%d, v%d" % (acc, acc))
            e("v_add_f32 v%d, 1.0, v%d" % (acc, acc))
            e("v_rcp_f32 v%d, v%d" % (vGate, acc))
            bf16r(vGate)
            e("v_sub_f32 v%d, 1.0, v%d" % (vOmg, vGate))
            bf16r(vOmg)
        return Item(issue, consume, None, None, defer=(j != 3))

    def gu_item(i, which):
        def issue(s):
            if i == 0 and which == 0:
                e("s_mul_i32 s7, s%d, 36" % sW)
                e("v_add_u32 v%d, s7, v%d" % (vW, vG))
                e("v_mul_u32_u24 v%d, 9216, v%d" % (vW, vW))
                e("v_and_b32 v%d, 16, v%d" % (vX0 + 7, vR16))
                e("v_add3_u32 v%d, v%d, v%d, 64" % (vX0 + 7, vX0 + 7, vW))
                e("v_add_u32 v%d, 192, v%d" % (vX0 + 7, vX0 + 7))
                e("v_add_u32 v%d, v%d, v%d" % (vW, vW, vR16))
            so = soff(i * 36864)
            if which < 2:
                return a.vmem(("buffer_load_dwordx4 %s, v%d, %s, %s offen" + WF) % (vr(s), vW, srd(sWG if which == 0 else sWU), so))
            e("s_mov_b32 exec_lo, 0x00030003"); e("s_mov_b32 exec_hi, 0x00030003")
            a.vmem(("buffer_load_dwordx4 %s, v%d, %s, %s offen" + WF) % (vr(s), vX0 + 7, srd(sWG), so))
            e("s_mov_b32 exec_lo, 0x000c000c"); e("s_mov_b32 exec_hi, 0x000c000c")
            op = a.vmem(("buffer_load_dwordx4 %s, v%d, %s, %s offen" + WF) % (vr(s), vX0 + 7, srd(sWU), so))
            exec_all()
            return op
        def pre():
            if which == 0:
                buildB(i & 1, vXc, i)
        def consume(s):
            mfma(vAcc + 4 * which, i & 1, s, first=(i == 0))
        def post():
            if not (i == 8 and which == 2): return
            e("s_mul_i32 s6, s%d, 1536" % sW)
            e("v_add_u32 v%d, s6, v%d" % (vT1, vT0))
            exec_lo32()
            for c in range(3):
                e("ds_write_b128 v%d, %s offset:%d" % (vT1, vr(vAcc + 4 * c), GU + 512 * c))
            exec_all()
            barrier()
            L = newlabel("hred")
            e("s_cmp_ge_u32 s%d, 3" % sW); e("s_cbranch_scc1 %s" % L)
            e("s_lshl_b32 s6, s%d, 6" % sW)
            e("v_add_u32 v%d, s6, v0" % vT1)
            e("s_cmp_eq_u32 s%d, 2" % sW)
            e("s_cselect_b32 s6, 512, 0"); e("s_cselect_b32 s7, 64, 0"); e("s_add_u32 s7, s7, 512")
            e("v_lshlrev_b32 v%d, 2, v%d" % (vX0, vT1))
            e("v_add_u32 v%d, s7, v%d" % (vX0 + 1, vX0))
            e("v_add_u32 v%d, s6, v%d" % (vX0, vX0))
            for base, ad, dst in ((0, vX0, vX0 + 2), (0, vX0 + 1, vX0 + 3)):
                for w in range(16):
                    e("ds_read_b32 v%d, v%d offset:%d" % (vAcc + w, ad, GU + 1536 * w))
                e("s_waitcnt lgkmcnt(0)")
                for st in (8, 4, 2):
                    for w in range(st):
                        e("v_add_f32 v%d, v%d, v%d" % (vAcc + w, vAcc + w, vAcc + w + st))
                e("v_add_f32 v%d, v%d, v%d" % (dst, vAcc, vAcc + 1))
            g, u = vX0 + 2, vX0 + 3
            bf16r2(g, u, vAcc)
            y = vAcc
            c0 = 0.7978845608028654; c1 = c0 * 0.044715
            e("v_mul_f32 v%d, v%d, v%d" % (y, g, g))
            e("s_mov_b32 s6, %s" % f32(c1)); e("v_mov_b32 v%d, %s" % (vAcc + 1, f32(c0)))
            e("v_fma_f32 v%d, v%d, s6, v%d" % (y, y, vAcc + 1))
            e("v_mul_f32 v%d, v%d, v%d" % (y, y, g))
            e("v_mul_f32 v%d, %s, v%d" % (y, f32(-2.0 * 1.4426950408889634), y))
            e("v_exp_f32 v%d, v%d" % (y, y))
            e("v_add_f32 v%d, 1.0, v%d" % (y, y))
            e("v_rcp_f32 v%d, v%d" % (y, y))
            e("v_mul_f32 v%d, v%d, v%d" % (y, y, g))
            bf16r(y)
            e("v_mul_f32 v%d, v%d, v%d" % (y, y, u))
            if dbg:
                e("v_lshlrev_b32 v%d, 2, v%d" % (vAcc + 2, vT1))
                e("buffer_store_dword v%d, v%d, %s, s95 offen offset:1024" % (y, vAcc + 2, srd(sWS)))
                e("buffer_store_dword v%d, v%d, %s, s95 offen offset:2048" % (g, vAcc + 2, srd(sWS)))
                e("s_nop 3")
            e("v_cvt_pk_bf16_f32 v%d, v%d, v%d" % (y, y, y))
            e("v_cmp_gt_u32 vcc, 144, v%d" % vT1)
            e("v_cndmask_b32 v%d, 0, v%d, vcc" % (y, y))
            e("v_lshlrev_b32 v%d, 1, v%d" % (vT1, vT1))
            e("ds_write_b16 v%d, v%d offset:%d" % (vT1, y, HB))
            e("%s:" % L)
        return Item(issue, consume, pre, post)

    def publish(part, ldsbase):
        e("s_lshl_b32 s6, s%d, 8" % sW)
        e("v_lshl_add_u32 v%d, v0, 2, s6" % vX0)
        if ldsbase + 2560 * 15 > 65535:
            e("v_add_u32 v%d, 0x%x, v%d" % (vX0 + 1, ldsbase, vX0)); ad = vX0 + 1; lb = 0
        else:
            ad = vX0; lb = ldsbase
        for w in range(16):
            e("ds_read_b32 v%d, v%d offset:%d" % (vAcc + w, ad, lb + 2560 * w))
        e("s_waitcnt lgkmcnt(0)")
        for st in (8, 4, 2, 1):
            for w in range(st):
                e("v_add_f32 v%d, v%d, v%d" % (vAcc + w, vAcc + w, vAcc + w + st))
        e("v_lshlrev_b32 v%d, 2, v0" % vX0)
        e("s_add_u32 s6, s%d, %d" % (sWsOff, part * 8192))
        return "buffer_store_dword v%d, v%d, %s, s6 offen sc1" % (vAcc, vX0, srd(sWS))

    def write_out_partials(ldsbase):
        e("s_mul_i32 s6, s%d, 2560" % sW)
        e("s_add_u32 s6, s6, %d" % ldsbase)
        e("v_add_u32 v%d, s6, v%d" % (vT1, vT0))
        exec_lo32()
        for c in range(5):
            e("ds_write_b128 v%d, %s offset:%d" % (vT1, vr(vAcc + 4 * c), 512 * c))
        exec_all()

    def dn_item(i, c):
        def issue(s):
            if i == 0 and c == 0:
                e("s_lshl_b32 s7, s%d, 2" % sW)
                e("v_add_u32 v%d, s7, v%d" % (vW, vG))
                e("v_mul_u32_u24 v%d, 1152, v%d" % (vW, vW))
                e("v_add_u32 v%d, v%d, v%d" % (vW, vW, vR16))
            return a.vmem(("buffer_load_dwordx4 %s, v%d, %s, %s offen offset:%d" + WF) % (vr(s), vW, srd(sWD), soff(i * 73728), c * 256))
        def pre():
            if i == 0 and c == 0:
                barrier()
                e("v_lshrrev_b32 v%d, 4, v%d" % (vT1, vR16))
                e("v_min_u32 v%d, 2, v%d" % (vT1, vT1))
                e("v_lshl_add_u32 v%d, v%d, 6, v%d" % (vT1, vT1, vG))
                e("s_lshl_b32 s7, s%d, 2" % sW)
                e("v_add_u32 v%d, s7, v%d" % (vT1, vT1))
                e("v_lshlrev_b32 v%d, 1, v%d" % (vT1, vT1))
                e("ds_read_u16 v%d, v%d offset:%d" % (vXc, vT1, HB))
                e("s_waitcnt lgkmcnt(0)")
                e("v_lshl_or_b32 v%d, v%d, 16, v%d" % (vXc, vXc, vXc))
            if c == 0:
                buildB(i & 1, vXc, i)
        def consume(s):
            mfma(vAcc + 4 * c, i & 1, s, first=(i == 0))
        def post():
            if not (i == 2 and c == 4): return
            write_out_partials(DP)
            barrier()
            L = newlabel("bpub")
            e("s_cmp_ge_u32 s%d, 9" % sW); e("s_cbranch_scc1 %s" % L)
            e(publish(1, DP))
            e("%s:" % L)
        return Item(issue, consume, pre, post)

    vOc = vX0 + 4
    def wo_item(i, c):
        def issue(s):
            if i == 0 and c == 0:
                e("s_lshl_b32 s7, s%d, 3" % sW)
                e("v_add_u32 v%d, s7, v%d" % (vW, vG))
                e("v_mul_u32_u24 v%d, 1152, v%d" % (vW, vW))
                e("v_add_u32 v%d, v%d, v%d" % (vW, vW, vR16))
            return a.vmem(("buffer_load_dwordx4 %s, v%d, %s, %s offen offset:%d" + WF) % (vr(s), vW, srd(sWO), soff(i * 4608), c * 256))
        def pre():
            if i == 0 and c == 0:
                stamp()
                e("v_add_f32_dpp v%d, v%d, v%d row_ror:4 row_mask:0xf bank_mask:0xf" % (vL, vL, vL))
                e("v_add_f32_dpp v%d, v%d, v%d row_ror:8 row_mask:0xf bank_mask:0xf" % (vL, vL, vL))
                cross_row("v_add_f32", vL)
                e("s_mul_i32 s6, s%d, 528" % sW)
                e("v_add_u32 v%d, s6, v%d" % (vT1, vT0))
                exec_lo32()
                e("ds_write_b128 v%d, %s offset:%d" % (vT1, vr(vO), OP))
                e("s_mov_b32 exec_lo, 1")
                e("s_lshl_b32 s6, s%d, 3" % sW)
                e("v_mov_b32 v%d, s6" % vT1)
                e("v_mov_b32 v%d, v%d" % (vX0, vM)); e("v_mov_b32 v%d, v%d" % (vX0 + 1, vL))
                e("ds_write_b64 v%d, %s offset:%d" % (vT1, vr(vX0, 2), ML))
                exec_all()
                barrier()
                e("v_lshrrev_b32 v%d, 1, v%d" % (vT1, vR16))
                e("ds_read_b64 %s, v%d offset:%d" % (vr(vX0, 2), vT1, ML))
                e("v_lshrrev_b32 v%d, 4, v%d" % (vT1, vR16))
                e("v_mul_u32_u24 v%d, 528, v%d" % (vT1, vT1))
                e("v_lshl_add_u32 v%d, v%d, 2, v%d" % (vT1, vG, vT1))
                e("s_lshl_b32 s6, s%d, 5" % sW)
                e("v_add_u32 v%d, s6, v%d" % (vT1, vT1))
                e("ds_read_b32 v%d, v%d offset:%d" % (vOc, vT1, OP))
                e("ds_read_b32 v%d, v%d offset:%d" % (vOc + 1, vT1, OP + 16))
                e("s_waitcnt lgkmcnt(0)")
                mr, lr, mm = vX0, vX0 + 1, vX0 + 2
                e("v_mov_b32 v%d, v%d" % (mm, mr))
                row_allreduce("v_max_f32", [mm])
                e("v_sub_f32 v%d, v%d, v%d" % (mr, mr, mm))
                e("v_mul_f32 v%d, s%d, v%d" % (mr, sLog2e, mr))
                e("v_exp_f32 v%d, v%d" % (mr, mr))
                for r in (lr, vOc, vOc + 1):
                    e("v_mul_f32 v%d, v%d, v%d" % (r, r, mr))
                row_allreduce("v_add_f32", [lr, vOc, vOc + 1])
                e("v_rcp_f32 v%d, v%d" % (lr, lr))
                for r in (vOc, vOc + 1):
                    e("v_mul_f32 v%d, v%d, v%d" % (r, r, lr))
                if dbg:
                    e("s_lshl_b32 s6, s%d, 5" % sW)
                    e("v_lshl_add_u32 v%d, v%d, 2, s6" % (vT1, vG))
                    e("buffer_store_dword v%d, v%d, %s, s95 offen offset:3072" % (vOc, vT1, srd(sWS)))
                    e("buffer_store_dword v%d, v%d, %s, s95 offen offset:3088" % (vOc + 1, vT1, srd(sWS)))
                    e("s_nop 3")
                for r in (vOc, vOc + 1):
                    e("v_cvt_pk_bf16_f32 v%d, v%d, v%d" % (r, r, r))
                buildB(0, vOc); buildB(1, vOc + 1)
                stamp()
        def consume(s):
            mfma(vAcc + 4 * c, i & 1, s, first=(i == 0))
        return Item(issue, consume, pre, None)

    add_kv(0)
    for j in range(4): stream.append(gv_item(j))
    if not noffn:
        for i in range(9):
            for which in range(3): stream.append(gu_item(i, which))
    add_kv(1); add_kv(2)
    if not noffn:
        for i in range(3):
            for c in range(5): stream.append(dn_item(i, c))
    for t in range(3, NB): add_kv(t)
    for i in range(2):
        for c in range(5): stream.append(wo_item(i, c))

    n = len(stream)
    slot = lambda p: RING0 + 4 * (p % R)
    for p in range(R):
        stream[p].op = stream[p].issue(slot(p))
    e("v_and_b32 v%d, 16, v%d" % (vT1, vR16))
    e("v_mov_b32 v%d, 0xffff" % vT0)
    e("v_lshlrev_b32 v%d, v%d, v%d" % (vT0, vT1, vT0))
    e("v_lshrrev_b32 v%d, 5, v%d" % (vT1, vR16))
    for w in range(4):
        e("v_cmp_eq_u32 vcc, %d, v%d" % (w, vT1))
        e("v_cndmask_b32 v%d, 0, v%d, vcc" % (vMask + w, vT0))
    e("s_mul_i32 s%d, s%d, 288" % (sA, sH))
    make_srd(sWG, pWG, sA, 575 * 9216 + 288)
    make_srd(sWU, pWU, sA, 575 * 9216 + 288)
    e("s_mul_i32 s%d, s%d, %d" % (sA, sH, 144 * 1152))
    make_srd(sWD, pWD, sA, 144 * 1152)
    e("s_mul_i32 s%d, s%d, %d" % (sA, sH, 128 * 1152))
    make_srd(sWO, pWO, sA, 128 * 1152)
    make_srd(sGW, pGW, None, 1152)
    make_srd(sWS, pWS, None, (64 << 20) if (dbg or stamps) else 8 * 9 * 2 * 32 * 256)
    if dbg:
        e("s_lshl_b32 s95, s%d, 5" % sBt); e("s_add_u32 s95, s95, s%d" % sH); e("s_lshl_b32 s95, s95, 12"); e("s_add_u32 s95, s95, 0x400000")
    make_srd(sOUT, pOUT, None, 4608 * 2)
    make_srd(sDBG, pDBG, None, 256)
    e("s_mul_i32 s%d, s%d, 9" % (sC, sBt)); e("s_add_u32 s%d, s%d, s%d" % (sC, sC, sW))
    e("s_lshl_b32 s%d, s%d, 6" % (sWsOff, sC)); e("s_add_u32 s%d, s%d, s%d" % (sWsOff, sWsOff, sH))
    e("s_lshl_b32 s%d, s%d, 8" % (sWsOff, sWsOff))
    e("v_mov_b32 v%d, 0" % vT1)
    e("ds_write_b32 v%d, v%d offset:%d" % (vT1, vT1, C8))
    e("ds_write_b32 v%d, v%d offset:%d" % (vT1, vT1, C9))
    e("v_mov_b32 v%d, 0xff7fffff" % vM)
    e("v_mov_b32 v%d, 0" % vL)
    for k in range(4): e("v_mov_b32 v%d, 0" % (vO + k))

    pend = []
    for p in range(n):
        it = stream[p]
        if it.pre: it.pre()
        a.wait_vm(it.op)
        if it.consume: it.consume(slot(p))
        pend.append(p)
        if not it.defer:
            for q in pend:
                if q + R < n:
                    stream[q + R].op = stream[q + R].issue(slot(q))
            pend = []
        if it.post: it.post()

    write_out_partials(AP)
    barrier()
    stamp()
    e("s_cmp_ge_u32 s%d, 9" % sW); e("s_cbranch_scc1 %s" % ("L_st" if stamps else "L_done"))
    e(publish(0, AP))
    e("s_waitcnt vmcnt(0)")
    stamp()
    e("v_mov_b32 v%d, 1" % vX0); e("v_mov_b32 v%d, 0" % (vX0 + 1))
    e("s_mov_b32 exec_lo, 1"); e("s_mov_b32 exec_hi, 0")
    e("ds_add_rtn_u32 v%d, v%d, v%d offset:%d" % (vX0 + 2, vX0 + 1, vX0, C8))
    e("s_waitcnt lgkmcnt(0)")
    e("v_readfirstlane_b32 s7, v%d" % (vX0 + 2))
    e("s_nop 3")
    e("s_cmp_lg_u32 s7, 8"); e("s_cbranch_scc1 L_arw")
    e("s_lshl_b32 s6, s%d, 4" % sBt); e("v_mov_b32 v%d, s6" % (vX0 + 2))
    e("buffer_atomic_add v%d, v%d, %s, 0 offen sc0" % (vX0, vX0 + 2, srd(sDBG)))
    e("s_waitcnt vmcnt(0)")
    e("v_add_u32 v%d, 1, v%d" % (vX0, vX0))
    e("ds_write_b32 v%d, v%d offset:%d" % (vX0 + 1, vX0, C9))
    e("L_arw:")
    e("ds_read_b32 v%d, v%d offset:%d" % (vX0 + 2, vX0 + 1, C9))
    e("s_waitcnt lgkmcnt(0)")
    e("v_readfirstlane_b32 s%d, v%d" % (sA, vX0 + 2))
    e("s_nop 3")
    e("s_cmp_eq_u32 s%d, 0" % sA); e("s_cbranch_scc1 L_arw")
    exec_all()
    stamp()
    e("s_cmp_lg_u32 s%d, 32" % sA); e("s_cbranch_scc1 %s" % ("L_st" if stamps else "L_done"))
    e("s_lshl_b32 s6, s%d, 14" % sC)
    e("v_lshlrev_b32 v%d, 4, v0" % vX0)
    for part in range(2):
        for i in range(8):
            if i % 4 == 0:
                e("s_add_u32 s7, s6, %d" % (part * 8192 + (i // 4) * 4096))
            e("buffer_load_dwordx4 %s, v%d, %s, s7 offen offset:%d sc1" % (vr(RING0 + 4 * (part * 8 + i)), vX0, srd(sWS), (i % 4) * 1024))
    for part in range(2):
        e("s_waitcnt vmcnt(%d)" % (8 - 8 * part))
        b0 = RING0 + 32 * part
        for st in (4, 2, 1):
            for i in range(st):
                for d in range(4):
                    e("v_add_f32 v%d, v%d, v%d" % (b0 + 4 * i + d, b0 + 4 * i + d, b0 + 4 * (i + st) + d))
        e("v_permlane32_swap_b32 v%d, v%d" % (b0, b0 + 2))
        e("v_permlane32_swap_b32 v%d, v%d" % (b0 + 1, b0 + 3))
        e("v_add_f32 v%d, v%d, v%d" % (b0, b0, b0 + 2))
        e("v_add_f32 v%d, v%d, v%d" % (b0 + 1, b0 + 1, b0 + 3))
        e("v_permlane16_swap_b32 v%d, v%d" % (b0, b0 + 1))
        e("v_add_f32 v%d, v%d, v%d" % (b0, b0, b0 + 1))
    A, Bq = RING0, RING0 + 32
    bf16r2(A, Bq, vX0 + 1)
    e("v_mul_f32 v%d, v%d, v%d" % (A, A, vGate)); e("v_mul_f32 v%d, v%d, v%d" % (Bq, Bq, vOmg))
    bf16r2(A, Bq, vX0 + 1)
    e("v_add_f32 v%d, v%d, v%d" % (A, A, Bq))
    e("v_cvt_pk_bf16_f32 v%d, v%d, v%d" % (A, A, A))
    e("s_mul_i32 s6, s%d, 576" % sBt); e("s_lshl_b32 s7, s%d, 6" % sW); e("s_add_u32 s6, s6, s7")
    e("v_lshrrev_b32 v%d, 2, v%d" % (vX0, vR16))
    e("v_add3_u32 v%d, v%d, v%d, s6" % (vX0, vX0, vG))
    e("v_lshlrev_b32 v%d, 1, v%d" % (vX0, vX0))
    e("buffer_store_short v%d, v%d, %s, 0 offen" % (A, vX0, srd(sOUT)))
    if stamps:
        e("s_waitcnt vmcnt(0)")
        stamp()
        e("L_st:")
        e("s_lshl_b32 s6, s2, 4"); e("s_add_u32 s6, s6, s%d" % sW); e("s_lshl_b32 s6, s6, 8"); e("s_add_u32 s6, s6, 0x800000")
        e("v_lshlrev_b32 v%d, 2, v0" % vX0)
        e("s_nop 4")
        e("buffer_store_dword v54, v%d, %s, s6 offen" % (vX0, srd(sWS)))
    e("L_done:")
    e("s_endpgm")

    body = a.finish()
    nv = RING0 + 4 * R
    assert nv <= 128 and 16 <= R
    out = [HDR.rstrip(), "; @launch grid=(256,1,1) block=(1024,1,1) lds=%d" % LDS_BYTES,
           '.amdgcn_target "amdgcn-amd-amdhsa--gfx950"', ".text", ".globl %s" % KN, ".p2align 8",
           ".type %s,@function" % KN, "%s:" % KN] + body + [
           '.section .rodata,"a"', ".p2align 6", ".amdhsa_kernel %s" % KN,
           "  .amdhsa_next_free_vgpr 128", "  .amdhsa_next_free_sgpr 102", "  .amdhsa_accum_offset 128",
           "  .amdhsa_group_segment_fixed_size 0", "  .amdhsa_kernarg_size 104", "  .amdhsa_user_sgpr_count 2",
           "  .amdhsa_user_sgpr_kernarg_segment_ptr 1", "  .amdhsa_system_sgpr_workgroup_id_x 1", ".end_amdhsa_kernel"]
    return "\n".join(out) + "\n"

if __name__ == "__main__":
    dst = sys.argv[1] if len(sys.argv) > 1 else "gated_mix__mha_block_cached__glu_gated_geglu__decode.s"
    kw = {}
    for x in sys.argv[2:]:
        k, v = x.split("=")
        kw[k] = int(v)
    open(dst, "w").write(gen(**kw))
    print("wrote", dst, "LDS", LDS_BYTES)
```

```python
import sys, struct
from asmlib import Asm
REF = open("gated_mix__mha_block_cached__glu_gated_geglu__decode.s.ref").read()
HDR = REF.split("; Override launch")[0]
KN = "gated_mix__mha_block_cached__glu_gated_geglu__decode_kernel"

def f32(x):
    return "0x%08x" % struct.unpack("<I", struct.pack("<f", x))[0]

vLane, vKV, vR16, vG = 0, 1, 2, 3
vMask = 4
vQ = 8
vXc, vM, vL, vGate, vOmg, vW, vT0, vT1 = 12, 13, 14, 15, 16, 17, 18, 19
vO = 20
vB = 24
vAcc = 32
vS = 32
vT = 40
vU = 44
vN, vAl = 46, 47
vX0 = 48
RING0 = 56
sW, sBt, sH = 3, 4, 5
sK, sV, sWQ, sWG, sWU, sWD, sWO = 8, 12, 16, 20, 24, 28, 32
pX, pK, pV, pWQ, pWO, pBX, pWG, pWU, pWD, pGW, pOUT, pDBG, pWS = 36, 38, 40, 42, 44, 46, 48, 50, 52, 54, 56, 58, 60
sX, sGW, sWS, sOUT, sDBG = 64, 68, 72, 76, 80
sKV, sOff, sTmp = 84, 85, 86
sR = 88
sA, sB2, sC = 92, 93, 94
sScale, sLog2e = 96, 97
sWsOff = 98
sHi = 99
QP = 0
QB = 8192
C8 = QB + 256
C9 = QB + 260
HB = QB + 512
OP = HB + 512
ML = OP + 8448
GU = ML + 128
DP = GU + 24576
AP = DP + 40960
LDS_BYTES = AP + 40960

def srd(x):
    return "s[%d:%d]" % (x, x + 3)
def vr(x, n=4):
    return "v[%d:%d]" % (x, x + n - 1)

class Item:
    def __init__(self, issue, consume=None, pre=None, post=None, defer=False):
        self.issue = issue; self.consume = consume; self.pre = pre; self.post = post; self.defer = defer
        self.op = None

def gen(R=18, stamps=False, dbg=False, wnt=0, noffn=0, nomap=0, pat=0, ga=0, da=2):
    WF = ' nt' if wnt else ''
    a = Asm(); e = a.e
    NB = 8
    def make_srd(d, p, off_sgpr, size):
        if off_sgpr is None:
            e("s_mov_b32 s%d, s%d" % (d, p)); e("s_and_b32 s%d, s%d, 0xffff" % (d + 1, p + 1))
        else:
            e("s_add_u32 s%d, s%d, s%d" % (d, p, off_sgpr)); e("s_addc_u32 s%d, s%d, 0" % (d + 1, p + 1))
            e("s_and_b32 s%d, s%d, 0xffff" % (d + 1, d + 1))
        e("s_mov_b32 s%d, 0x%x" % (d + 2, size)); e("s_mov_b32 s%d, 0x20000" % (d + 3))
    def exec_lo32():
        e("s_mov_b32 exec_lo, -1"); e("s_mov_b32 exec_hi, 0")
    def exec_all():
        e("s_mov_b64 exec, -1")
    def bf16r2(x, y, t):
        e("v_cvt_pk_bf16_f32 v%d, v%d, v%d" % (t, x, y))
        e("v_lshlrev_b32 v%d, 16, v%d" % (x, t))
        e("v_and_b32 v%d, s%d, v%d" % (y, sHi, t))
    def bf16r(x):
        e("v_cvt_pk_bf16_f32 v%d, v%d, v%d" % (x, x, x))
        e("v_lshlrev_b32 v%d, 16, v%d" % (x, x))
    def row_allreduce(op, regs):
        for sh in (1, 2, 4, 8):
            for r in regs:
                e("%s_dpp v%d, v%d, v%d row_ror:%d row_mask:0xf bank_mask:0xf" % (op, r, r, r, sh))
    def cross_row(op, x, init=None):
        for k in range(4):
            e("v_readlane_b32 s%d, v%d, %d" % (sR + k, x, 16 * k))
        if init is None:
            e("v_mov_b32 v%d, s%d" % (x, sR))
            ks = (1, 2, 3)
        else:
            e("%s v%d, s%d, v%d" % (op, x, sR, init))
            ks = (1, 2, 3)
        for k in ks:
            e("%s v%d, s%d, v%d" % (op, x, sR + k, x))
    def buildB(bset, coef, lane=None):
        for w in range(4):
            if lane is None:
                e("v_and_b32 v%d, v%d, v%d" % (vB + 4 * bset + w, coef, vMask + w))
            else:
                e("v_and_b32_dpp v%d, v%d, v%d row_newbcast:%d row_mask:0xf bank_mask:0xf" % (vB + 4 * bset + w, coef, vMask + w, lane))
    def mfma(acc, bset, slot, first=False):
        e("v_mfma_f32_16x16x32_bf16 %s, %s, %s, %s" % (vr(acc), vr(vB + 4 * bset), vr(slot), "0" if first else vr(acc)))
    def barrier():
        e("s_waitcnt lgkmcnt(0)"); e("s_barrier")
    lab = [0]
    nst = [0]
    def stamp():
        if not stamps: return
        k = nst[0]; nst[0] += 1
        e("s_memrealtime s[100:101]")
        e("s_waitcnt lgkmcnt(0)")
        e("v_writelane_b32 v54, s100, %d" % k)
    def newlabel(s):
        lab[0] += 1
        return "L_%s_%d" % (s, lab[0])

    e("s_cmp_ge_u32 s2, 256"); e("s_cbranch_scc1 L_done")
    e("s_load_dwordx16 s[36:51], s[0:1], 0")
    e("s_load_dwordx8 s[52:59], s[0:1], 64")
    e("s_load_dwordx2 s[60:61], s[0:1], 96")
    e("v_lshrrev_b32 v%d, 6, v0" % vW)
    e("v_and_b32 v0, 63, v0")
    e("v_readfirstlane_b32 s%d, v%d" % (sW, vW))
    e("s_and_b32 s6, s2, 7"); e("s_lshr_b32 s7, s2, 3"); e("s_and_b32 s%d, s7, 3" % sH)
    e("s_lshl_b32 s6, s6, 2"); e("s_add_u32 s%d, s%d, s6" % (sH, sH)); e("s_lshr_b32 s%d, s7, 2" % sBt)
    if nomap:
        e("s_and_b32 s%d, s2, 31" % sH); e("s_lshr_b32 s%d, s2, 5" % sBt)
    e("s_mov_b32 s%d, %s" % (sScale, f32(128 ** -0.5)))
    e("s_mov_b32 s%d, %s" % (sLog2e, f32(1.4426950408889634)))
    e("s_mov_b32 s%d, 0xffff0000" % sHi)
    if stamps: e("v_mov_b32 v54, 0")
    e("v_and_b32 v%d, 15, v0" % vT0)
    e("v_lshrrev_b32 v%d, 4, v0" % vG)
    e("v_lshlrev_b32 v%d, 4, v%d" % (vR16, vT0))
    e("v_lshlrev_b32 v%d, 4, v0" % vKV)
    e("s_lshl_b32 s6, s%d, %d" % (sW, {0: 13, 1: 16, 2: 14, 3: 15, 4: 12, 5: 10, 6: 11}[pat]))
    e("v_add_u32 v%d, s6, v%d" % (vKV, vKV))
    e("s_mul_i32 s7, s%d, 36" % sW)
    e("v_min_u32 v%d, 8, v%d" % (vT1, vT0))
    e("v_lshl_add_u32 v%d, v%d, 2, v%d" % (vT1, vT1, vG))
    e("v_add_u32 v%d, s7, v%d" % (vT1, vT1))
    e("v_lshlrev_b32 v%d, 1, v%d" % (vT1, vT1))
    e("v_add_u32 v%d, s7, v%d" % (vW, vG))
    e("v_lshlrev_b32 v%d, 13, v%d" % (vW, vW))
    e("v_add_u32 v%d, v%d, v%d" % (vW, vW, vR16))
    e("s_lshl_b32 s%d, s%d, 5" % (sKV, sBt)); e("s_add_u32 s%d, s%d, s%d" % (sKV, sKV, sH)); e("s_lshl_b32 s%d, s%d, 20" % (sKV, sKV))
    e("s_mul_i32 s%d, s%d, 1152" % (sA, sBt))
    e("s_lshl_b32 s%d, s%d, 8" % (sB2, sH))
    e("s_waitcnt lgkmcnt(0)")
    stamp()
    make_srd(sX, pX, sA, 1152)
    opx = a.vmem("buffer_load_ushort v%d, v%d, %s, 0 offen" % (vXc, vT1, srd(sX)))
    make_srd(sWQ, pWQ, sB2, 575 * 8192 + 256)
    make_srd(sK, pK, None, 0x10000000)
    make_srd(sV, pV, None, 0x10000000)

    late = []

    stream = []
    state = {"soff": None, "wtype": "wq"}
    def soff(val):
        if val == 0:
            return "0"
        if state["soff"] != val:
            e("s_mov_b32 s%d, 0x%x" % (sTmp, val)); state["soff"] = val
        return "s%d" % sTmp
    def kvsoff(val):
        if state.get("kv") != val:
            e("s_add_u32 s%d, s%d, 0x%x" % (sOff, sKV, val)); state["kv"] = val
        return "s%d" % sOff

    def wq_item(i):
        def issue(s):
            return a.vmem(("buffer_load_dwordx4 %s, v%d, %s, %s offen" + WF) % (vr(s), vW, srd(sWQ), soff(i * 32768)))
        def pre():
            if i == 0:
                a.wait_vm(opx)
                e("v_lshl_or_b32 v%d, v%d, 16, v%d" % (vXc, vXc, vXc))
            buildB(i & 1, vXc, i)
        def consume(s):
            mfma(vAcc, i & 1, s, first=(i == 0))
        def post():
            if i != 8: return
            e("s_lshl_b32 s6, s%d, 9" % sW)
            e("v_lshlrev_b32 v%d, 1, v%d" % (vT0, vR16))
            e("v_lshl_add_u32 v%d, v%d, 4, v%d" % (vT0, vG, vT0))
            e("v_add_u32 v%d, s6, v%d" % (vT1, vT0))
            exec_lo32()
            e("ds_write_b128 v%d, %s offset:%d" % (vT1, vr(vAcc), QP))
            exec_all()
            barrier()
            L = newlabel("qred")
            e("s_cmp_ge_u32 s%d, 2" % sW); e("s_cbranch_scc1 %s" % L)
            e("s_lshl_b32 s6, s%d, 6" % sW)
            e("v_add_u32 v%d, s6, v0" % vT1)
            e("v_lshlrev_b32 v%d, 2, v%d" % (vX0, vT1))
            for w in range(16):
                e("ds_read_b32 v%d, v%d offset:%d" % (vAcc + w, vX0, QP + 512 * w))
            e("s_waitcnt lgkmcnt(0)")
            for st in (8, 4, 2, 1):
                for w in range(st):
                    e("v_add_f32 v%d, v%d, v%d" % (vAcc + w, vAcc + w, vAcc + w + st))
            e("v_cvt_pk_bf16_f32 v%d, v%d, v%d" % (vAcc, vAcc, vAcc))
            e("v_lshlrev_b32 v%d, 1, v%d" % (vT1, vT1))
            e("ds_write_b16 v%d, v%d offset:%d" % (vT1, vAcc, QB))
            e("%s:" % L)
            barrier()
            e("ds_read_b128 %s, v%d offset:%d" % (vr(vQ), vR16, QB))
            e("s_waitcnt lgkmcnt(0)")
            if dbg:
                e("buffer_store_dwordx4 %s, v%d, %s, s95 offen" % (vr(vQ), vR16, srd(sWS)))
            stamp()
        return Item(issue, consume, pre, post)
    for i in range(9):
        stream.append(wq_item(i))

    BANK_OF = {0: 0, 1: 2, 2: 1, 3: 3}
    def boff(t):
        return {0: t * 131072, 1: t * 8192, 2: (t >> 1) * 262144 + (t & 1) * 8192, 3: (t >> 2) * 524288 + (t & 3) * 8192}[pat]
    def kvaddr(t, i):
        if pat == 4: return t * 131072 + (i // 4) * 65536, (i % 4) * 1024
        if pat == 5: return t * 131072 + i * 16384, 0
        if pat == 6: return t * 131072 + (i // 2) * 32768, (i % 2) * 1024
        return boff(t) + (i // 4) * 4096, (i % 4) * 1024
    def k_item(t, i):
        def issue(s):
            o, im = kvaddr(t, i)
            so = kvsoff(o)
            return a.vmem("buffer_load_dwordx4 %s, v%d, %s, %s offen offset:%d nt" % (vr(s), vKV, srd(sK), so, im))
        def consume(s):
            e("v_dot2_f32_bf16 v%d, v%d, v%d, 0" % (vS + i, s, vQ))
            for d in (1, 2, 3):
                e("v_dot2_f32_bf16 v%d, v%d, v%d, v%d" % (vS + i, s + d, vQ + d, vS + i))
        def post():
            if i != 7: return
            for half in (0, 1):
                s0 = vS + 4 * half; t0 = vT + 2 * half
                e("v_add_f32_dpp v%d, v%d, v%d row_ror:8 row_mask:0xf bank_mask:0x3" % (t0, s0, s0))
                e("v_add_f32_dpp v%d, v%d, v%d row_ror:8 row_mask:0xf bank_mask:0xc" % (t0, s0 + 1, s0 + 1))
                e("v_add_f32_dpp v%d, v%d, v%d row_ror:8 row_mask:0xf bank_mask:0x3" % (t0 + 1, s0 + 2, s0 + 2))
                e("v_add_f32_dpp v%d, v%d, v%d row_ror:8 row_mask:0xf bank_mask:0xc" % (t0 + 1, s0 + 3, s0 + 3))
            for half in (0, 1):
                t0 = vT + 2 * half
                e("v_add_f32_dpp v%d, v%d, v%d row_half_mirror row_mask:0xf bank_mask:0x5" % (vU + half, t0, t0))
                e("v_add_f32_dpp v%d, v%d, v%d row_half_mirror row_mask:0xf bank_mask:0xa" % (vU + half, t0 + 1, t0 + 1))
            for qp in ("[1,0,3,2]", "[2,3,0,1]"):
                for half in (0, 1):
                    e("v_add_f32_dpp v%d, v%d, v%d quad_perm:%s row_mask:0xf bank_mask:0xf" % (vU + half, vU + half, vU + half, qp))
            bf16r2(vU, vU + 1, vT)
            e("v_mul_f32 v%d, s%d, v%d" % (vU, sScale, vU)); e("v_mul_f32 v%d, s%d, v%d" % (vU + 1, sScale, vU + 1))
            bf16r2(vU, vU + 1, vT)
            e("v_max_f32 v%d, v%d, v%d" % (vN, vU, vU + 1))
            e("v_max_f32_dpp v%d, v%d, v%d row_ror:4 row_mask:0xf bank_mask:0xf" % (vN, vN, vN))
            e("v_max_f32_dpp v%d, v%d, v%d row_ror:8 row_mask:0xf bank_mask:0xf" % (vN, vN, vN))
            cross_row("v_max_f32", vN, init=vM)
            e("v_sub_f32 v%d, v%d, v%d" % (vAl, vM, vN))
            e("v_sub_f32 v%d, v%d, v%d" % (vU, vU, vN))
            e("v_sub_f32 v%d, v%d, v%d" % (vU + 1, vU + 1, vN))
            for r in (vAl, vU, vU + 1):
                e("v_mul_f32 v%d, s%d, v%d" % (r, sLog2e, r))
            for r in (vAl, vU, vU + 1):
                e("v_exp_f32 v%d, v%d" % (r, r))
            e("v_mov_b32 v%d, v%d" % (vM, vN))
            e("v_fma_f32 v%d, v%d, v%d, v%d" % (vL, vL, vAl, vU))
            e("v_add_f32 v%d, v%d, v%d" % (vL, vL, vU + 1))
            for k in range(4):
                e("v_mul_f32 v%d, v%d, v%d" % (vO + k, vO + k, vAl))
            e("v_cvt_pk_bf16_f32 v%d, v%d, v%d" % (vU, vU, vU))
            e("v_cvt_pk_bf16_f32 v%d, v%d, v%d" % (vU + 1, vU + 1, vU + 1))
            stamp()
        return Item(issue, consume, None, post)
    def v_item(t, i):
        def issue(s):
            o, im = kvaddr(t, i)
            so = kvsoff(o)
            return a.vmem("buffer_load_dwordx4 %s, v%d, %s, %s offen offset:%d nt" % (vr(s), vKV, srd(sV), so, im))
        def pre():
            buildB(i & 1, vU + (i >> 2), 4 * BANK_OF[i & 3])
        def consume(s):
            mfma(vO, i & 1, s)
        return Item(issue, consume, pre, None)
    def add_kv(t):
        for i in range(8): stream.append(k_item(t, i))
        for i in range(8): stream.append(v_item(t, i))

    gslots = []
    def gv_item(j):
        def issue(s):
            if j == 0:
                e("v_lshlrev_b32 v%d, 4, v0" % vW)
            return a.vmem("buffer_load_dwordx4 %s, v%d, %s, 0 offen offset:%d" % (vr(s), vW, srd(sX if j < 2 else sGW), (j & 1) * 1024))
        def consume(s):
            gslots.append(s)
            if j != 3: return
            acc = vAcc; x0, x1, g0, g1, pk = vAcc + 1, vAcc + 2, vAcc + 3, vAcc + 4, vAcc + 5
            e("v_mov_b32 v%d, 0" % acc)
            for p in (0, 1):
                for d in range(4):
                    xs = gslots[p] + d; gs = gslots[2 + p] + d
                    e("v_lshlrev_b32 v%d, 16, v%d" % (x0, xs)); e("v_and_b32 v%d, s%d, v%d" % (x1, sHi, xs))
                    e("v_lshlrev_b32 v%d, 16, v%d" % (g0, gs)); e("v_and_b32 v%d, s%d, v%d" % (g1, sHi, gs))
                    e("v_mul_f32 v%d, v%d, v%d" % (x0, x0, g0)); e("v_mul_f32 v%d, v%d, v%d" % (x1, x1, g1))
                    bf16r2(x0, x1, pk)
                    e("v_add_f32 v%d, v%d, v%d" % (acc, acc, x0)); e("v_add_f32 v%d, v%d, v%d" % (acc, acc, x1))
            row_allreduce("v_add_f32", [acc])
            cross_row("v_add_f32", acc)
            bf16r(acc)
            e("v_mul_f32 v%d, s%d, v%d" % (acc, sLog2e, acc))
            e("v_sub_f32 v%d, 0, v%d" % (acc, acc))
            e("v_exp_f32 v%d, v%d" % (acc, acc))
            e("v_add_f32 v%d, 1.0, v%d" % (acc, acc))
            e("v_rcp_f32 v%d, v%d" % (vGate, acc))
            bf16r(vGate)
            e("v_sub_f32 v%d, 1.0, v%d" % (vOmg, vGate))
            bf16r(vOmg)
        return Item(issue, consume, None, None, defer=(j != 3))

    def gu_item(i, which):
        def issue(s):
            if i == 0 and which == 0:
                e("s_mul_i32 s7, s%d, 36" % sW)
                e("v_add_u32 v%d, s7, v%d" % (vW, vG))
                e("v_mul_u32_u24 v%d, 9216, v%d" % (vW, vW))
                e("v_and_b32 v%d, 16, v%d" % (vX0 + 7, vR16))
                e("v_add3_u32 v%d, v%d, v%d, 64" % (vX0 + 7, vX0 + 7, vW))
                e("v_add_u32 v%d, 192, v%d" % (vX0 + 7, vX0 + 7))
                e("v_add_u32 v%d, v%d, v%d" % (vW, vW, vR16))
            so = soff(i * 36864)
            if which < 2:
                return a.vmem(("buffer_load_dwordx4 %s, v%d, %s, %s offen" + WF) % (vr(s), vW, srd(sWG if which == 0 else sWU), so))
            e("s_mov_b32 exec_lo, 0x00030003"); e("s_mov_b32 exec_hi, 0x00030003")
            a.vmem(("buffer_load_dwordx4 %s, v%d, %s, %s offen" + WF) % (vr(s), vX0 + 7, srd(sWG), so))
            e("s_mov_b32 exec_lo, 0x000c000c"); e("s_mov_b32 exec_hi, 0x000c000c")
            op = a.vmem(("buffer_load_dwordx4 %s, v%d, %s, %s offen" + WF) % (vr(s), vX0 + 7, srd(sWU), so))
            exec_all()
            return op
        def pre():
            if which == 0:
                buildB(i & 1, vXc, i)
        def consume(s):
            mfma(vAcc + 4 * which, i & 1, s, first=(i == 0))
        def post():
            if not (i == 8 and which == 2): return
            e("s_mul_i32 s6, s%d, 1536" % sW)
            e("v_add_u32 v%d, s6, v%d" % (vT1, vT0))
            exec_lo32()
            for c in range(3):
                e("ds_write_b128 v%d, %s offset:%d" % (vT1, vr(vAcc + 4 * c), GU + 512 * c))
            exec_all()
            barrier()
            L = newlabel("hred")
            e("s_cmp_ge_u32 s%d, 3" % sW); e("s_cbranch_scc1 %s" % L)
            e("s_lshl_b32 s6, s%d, 6" % sW)
            e("v_add_u32 v%d, s6, v0" % vT1)
            e("s_cmp_eq_u32 s%d, 2" % sW)
            e("s_cselect_b32 s6, 512, 0"); e("s_cselect_b32 s7, 64, 0"); e("s_add_u32 s7, s7, 512")
            e("v_lshlrev_b32 v%d, 2, v%d" % (vX0, vT1))
            e("v_add_u32 v%d, s7, v%d" % (vX0 + 1, vX0))
            e("v_add_u32 v%d, s6, v%d" % (vX0, vX0))
            for base, ad, dst in ((0, vX0, vX0 + 2), (0, vX0 + 1, vX0 + 3)):
                for w in range(16):
                    e("ds_read_b32 v%d, v%d offset:%d" % (vAcc + w, ad, GU + 1536 * w))
                e("s_waitcnt lgkmcnt(0)")
                for st in (8, 4, 2):
                    for w in range(st):
                        e("v_add_f32 v%d, v%d, v%d" % (vAcc + w, vAcc + w, vAcc + w + st))
                e("v_add_f32 v%d, v%d, v%d" % (dst, vAcc, vAcc + 1))
            g, u = vX0 + 2, vX0 + 3
            bf16r2(g, u, vAcc)
            y = vAcc
            c0 = 0.7978845608028654; c1 = c0 * 0.044715
            e("v_mul_f32 v%d, v%d, v%d" % (y, g, g))
            e("s_mov_b32 s6, %s" % f32(c1)); e("v_mov_b32 v%d, %s" % (vAcc + 1, f32(c0)))
            e("v_fma_f32 v%d, v%d, s6, v%d" % (y, y, vAcc + 1))
            e("v_mul_f32 v%d, v%d, v%d" % (y, y, g))
            e("v_mul_f32 v%d, %s, v%d" % (y, f32(-2.0 * 1.4426950408889634), y))
            e("v_exp_f32 v%d, v%d" % (y, y))
            e("v_add_f32 v%d, 1.0, v%d" % (y, y))
            e("v_rcp_f32 v%d, v%d" % (y, y))
            e("v_mul_f32 v%d, v%d, v%d" % (y, y, g))
            bf16r(y)
            e("v_mul_f32 v%d, v%d, v%d" % (y, y, u))
            if dbg:
                e("v_lshlrev_b32 v%d, 2, v%d" % (vAcc + 2, vT1))
                e("buffer_store_dword v%d, v%d, %s, s95 offen offset:1024" % (y, vAcc + 2, srd(sWS)))
                e("buffer_store_dword v%d, v%d, %s, s95 offen offset:2048" % (g, vAcc + 2, srd(sWS)))
                e("s_nop 3")
            e("v_cvt_pk_bf16_f32 v%d, v%d, v%d" % (y, y, y))
            e("v_cmp_gt_u32 vcc, 144, v%d" % vT1)
            e("v_cndmask_b32 v%d, 0, v%d, vcc" % (y, y))
            e("v_lshlrev_b32 v%d, 1, v%d" % (vT1, vT1))
            e("ds_write_b16 v%d, v%d offset:%d" % (vT1, y, HB))
            e("%s:" % L)
        return Item(issue, consume, pre, post)

    def publish(part, ldsbase):
        e("s_lshl_b32 s6, s%d, 8" % sW)
        e("v_lshl_add_u32 v%d, v0, 2, s6" % vX0)
        if ldsbase + 2560 * 15 > 65535:
            e("v_add_u32 v%d, 0x%x, v%d" % (vX0 + 1, ldsbase, vX0)); ad = vX0 + 1; lb = 0
        else:
            ad = vX0; lb = ldsbase
        for w in range(16):
            e("ds_read_b32 v%d, v%d offset:%d" % (vAcc + w, ad, lb + 2560 * w))
        e("s_waitcnt lgkmcnt(0)")
        for st in (8, 4, 2, 1):
            for w in range(st):
                e("v_add_f32 v%d, v%d, v%d" % (vAcc + w, vAcc + w, vAcc + w + st))
        e("v_lshlrev_b32 v%d, 2, v0" % vX0)
        e("s_add_u32 s6, s%d, %d" % (sWsOff, part * 8192))
        return "buffer_store_dword v%d, v%d, %s, s6 offen sc1" % (vAcc, vX0, srd(sWS))

    def write_out_partials(ldsbase):
        e("s_mul_i32 s6, s%d, 2560" % sW)
        e("s_add_u32 s6, s6, %d" % ldsbase)
        e("v_add_u32 v%d, s6, v%d" % (vT1, vT0))
        exec_lo32()
        for c in range(5):
            e("ds_write_b128 v%d, %s offset:%d" % (vT1, vr(vAcc + 4 * c), 512 * c))
        exec_all()

    def dn_item(i, c):
        def issue(s):
            if i == 0 and c == 0:
                e("s_lshl_b32 s7, s%d, 2" % sW)
                e("v_add_u32 v%d, s7, v%d" % (vW, vG))
                e("v_mul_u32_u24 v%d, 1152, v%d" % (vW, vW))
                e("v_add_u32 v%d, v%d, v%d" % (vW, vW, vR16))
            return a.vmem(("buffer_load_dwordx4 %s, v%d, %s, %s offen offset:%d" + WF) % (vr(s), vW, srd(sWD), soff(i * 73728), c * 256))
        def pre():
            if i == 0 and c == 0:
                barrier()
                e("v_lshrrev_b32 v%d, 4, v%d" % (vT1, vR16))
                e("v_min_u32 v%d, 2, v%d" % (vT1, vT1))
                e("v_lshl_add_u32 v%d, v%d, 6, v%d" % (vT1, vT1, vG))
                e("s_lshl_b32 s7, s%d, 2" % sW)
                e("v_add_u32 v%d, s7, v%d" % (vT1, vT1))
                e("v_lshlrev_b32 v%d, 1, v%d" % (vT1, vT1))
                e("ds_read_u16 v%d, v%d offset:%d" % (vXc, vT1, HB))
                e("s_waitcnt lgkmcnt(0)")
                e("v_lshl_or_b32 v%d, v%d, 16, v%d" % (vXc, vXc, vXc))
            if c == 0:
                buildB(i & 1, vXc, i)
        def consume(s):
            mfma(vAcc + 4 * c, i & 1, s, first=(i == 0))
        def post():
            if not (i == 2 and c == 4): return
            write_out_partials(DP)
            barrier()
            L = newlabel("bpub")
            e("s_cmp_ge_u32 s%d, 9" % sW); e("s_cbranch_scc1 %s" % L)
            e(publish(1, DP))
            e("%s:" % L)
        return Item(issue, consume, pre, post)

    vOc = vX0 + 4
    def wo_item(i, c):
        def issue(s):
            if i == 0 and c == 0:
                e("s_lshl_b32 s7, s%d, 3" % sW)
                e("v_add_u32 v%d, s7, v%d" % (vW, vG))
                e("v_mul_u32_u24 v%d, 1152, v%d" % (vW, vW))
                e("v_add_u32 v%d, v%d, v%d" % (vW, vW, vR16))
            return a.vmem(("buffer_load_dwordx4 %s, v%d, %s, %s offen offset:%d" + WF) % (vr(s), vW, srd(sWO), soff(i * 4608), c * 256))
        def pre():
            if i == 0 and c == 0:
                stamp()
                e("v_add_f32_dpp v%d, v%d, v%d row_ror:4 row_mask:0xf bank_mask:0xf" % (vL, vL, vL))
                e("v_add_f32_dpp v%d, v%d, v%d row_ror:8 row_mask:0xf bank_mask:0xf" % (vL, vL, vL))
                cross_row("v_add_f32", vL)
                e("s_mul_i32 s6, s%d, 528" % sW)
                e("v_add_u32 v%d, s6, v%d" % (vT1, vT0))
                exec_lo32()
                e("ds_write_b128 v%d, %s offset:%d" % (vT1, vr(vO), OP))
                e("s_mov_b32 exec_lo, 1")
                e("s_lshl_b32 s6, s%d, 3" % sW)
                e("v_mov_b32 v%d, s6" % vT1)
                e("v_mov_b32 v%d, v%d" % (vX0, vM)); e("v_mov_b32 v%d, v%d" % (vX0 + 1, vL))
                e("ds_write_b64 v%d, %s offset:%d" % (vT1, vr(vX0, 2), ML))
                exec_all()
                barrier()
                e("v_lshrrev_b32 v%d, 1, v%d" % (vT1, vR16))
                e("ds_read_b64 %s, v%d offset:%d" % (vr(vX0, 2), vT1, ML))
                e("v_lshrrev_b32 v%d, 4, v%d" % (vT1, vR16))
                e("v_mul_u32_u24 v%d, 528, v%d" % (vT1, vT1))
                e("v_lshl_add_u32 v%d, v%d, 2, v%d" % (vT1, vG, vT1))
                e("s_lshl_b32 s6, s%d, 5" % sW)
                e("v_add_u32 v%d, s6, v%d" % (vT1, vT1))
                e("ds_read_b32 v%d, v%d offset:%d" % (vOc, vT1, OP))
                e("ds_read_b32 v%d, v%d offset:%d" % (vOc + 1, vT1, OP + 16))
                e("s_waitcnt lgkmcnt(0)")
                mr, lr, mm = vX0, vX0 + 1, vX0 + 2
                e("v_mov_b32 v%d, v%d" % (mm, mr))
                row_allreduce("v_max_f32", [mm])
                e("v_sub_f32 v%d, v%d, v%d" % (mr, mr, mm))
                e("v_mul_f32 v%d, s%d, v%d" % (mr, sLog2e, mr))
                e("v_exp_f32 v%d, v%d" % (mr, mr))
                for r in (lr, vOc, vOc + 1):
                    e("v_mul_f32 v%d, v%d, v%d" % (r, r, mr))
                row_allreduce("v_add_f32", [lr, vOc, vOc + 1])
                e("v_rcp_f32 v%d, v%d" % (lr, lr))
                for r in (vOc, vOc + 1):
                    e("v_mul_f32 v%d, v%d, v%d" % (r, r, lr))
                if dbg:
                    e("s_lshl_b32 s6, s%d, 5" % sW)
                    e("v_lshl_add_u32 v%d, v%d, 2, s6" % (vT1, vG))
                    e("buffer_store_dword v%d, v%d, %s, s95 offen offset:3072" % (vOc, vT1, srd(sWS)))
                    e("buffer_store_dword v%d, v%d, %s, s95 offen offset:3088" % (vOc + 1, vT1, srd(sWS)))
                    e("s_nop 3")
                for r in (vOc, vOc + 1):
                    e("v_cvt_pk_bf16_f32 v%d, v%d, v%d" % (r, r, r))
                buildB(0, vOc); buildB(1, vOc + 1)
                stamp()
        def consume(s):
            mfma(vAcc + 4 * c, i & 1, s, first=(i == 0))
        return Item(issue, consume, pre, None)

    for t in range(NB):
        add_kv(t)
        if t == ga:
            for j in range(4): stream.append(gv_item(j))
            for i in range(9):
                for which in range(3): stream.append(gu_item(i, which))
        if t == da:
            for i in range(3):
                for c in range(5): stream.append(dn_item(i, c))
    for i in range(2):
        for c in range(5): stream.append(wo_item(i, c))

    n = len(stream)
    slot = lambda p: RING0 + 4 * (p % R)
    for p in range(R):
        stream[p].op = stream[p].issue(slot(p))
    e("v_and_b32 v%d, 16, v%d" % (vT1, vR16))
    e("v_mov_b32 v%d, 0xffff" % vT0)
    e("v_lshlrev_b32 v%d, v%d, v%d" % (vT0, vT1, vT0))
    e("v_lshrrev_b32 v%d, 5, v%d" % (vT1, vR16))
    for w in range(4):
        e("v_cmp_eq_u32 vcc, %d, v%d" % (w, vT1))
        e("v_cndmask_b32 v%d, 0, v%d, vcc" % (vMask + w, vT0))
    e("s_mul_i32 s%d, s%d, 288" % (sA, sH))
    make_srd(sWG, pWG, sA, 575 * 9216 + 288)
    make_srd(sWU, pWU, sA, 575 * 9216 + 288)
    e("s_mul_i32 s%d, s%d, %d" % (sA, sH, 144 * 1152))
    make_srd(sWD, pWD, sA, 144 * 1152)
    e("s_mul_i32 s%d, s%d, %d" % (sA, sH, 128 * 1152))
    make_srd(sWO, pWO, sA, 128 * 1152)
    make_srd(sGW, pGW, None, 1152)
    make_srd(sWS, pWS, None, (64 << 20) if (dbg or stamps) else 8 * 9 * 2 * 32 * 256)
    if dbg:
        e("s_lshl_b32 s95, s%d, 5" % sBt); e("s_add_u32 s95, s95, s%d" % sH); e("s_lshl_b32 s95, s95, 12"); e("s_add_u32 s95, s95, 0x400000")
    make_srd(sOUT, pOUT, None, 4608 * 2)
    make_srd(sDBG, pDBG, None, 256)
    e("s_mul_i32 s%d, s%d, 9" % (sC, sBt)); e("s_add_u32 s%d, s%d, s%d" % (sC, sC, sW))
    e("s_lshl_b32 s%d, s%d, 6" % (sWsOff, sC)); e("s_add_u32 s%d, s%d, s%d" % (sWsOff, sWsOff, sH))
    e("s_lshl_b32 s%d, s%d, 8" % (sWsOff, sWsOff))
    e("v_mov_b32 v%d, 0" % vT1)
    e("ds_write_b32 v%d, v%d offset:%d" % (vT1, vT1, C8))
    e("ds_write_b32 v%d, v%d offset:%d" % (vT1, vT1, C9))
    e("v_mov_b32 v%d, 0xff7fffff" % vM)
    e("v_mov_b32 v%d, 0" % vL)
    for k in range(4): e("v_mov_b32 v%d, 0" % (vO + k))

    pend = []
    for p in range(n):
        it = stream[p]
        if it.pre: it.pre()
        a.wait_vm(it.op)
        if it.consume: it.consume(slot(p))
        pend.append(p)
        if not it.defer:
            for q in pend:
                if q + R < n:
                    stream[q + R].op = stream[q + R].issue(slot(q))
            pend = []
        if it.post: it.post()

    write_out_partials(AP)
    barrier()
    stamp()
    e("s_cmp_ge_u32 s%d, 9" % sW); e("s_cbranch_scc1 %s" % ("L_st" if stamps else "L_done"))
    e(publish(0, AP))
    e("s_waitcnt vmcnt(0)")
    stamp()
    e("v_mov_b32 v%d, 1" % vX0); e("v_mov_b32 v%d, 0" % (vX0 + 1))
    e("s_mov_b32 exec_lo, 1"); e("s_mov_b32 exec_hi, 0")
    e("ds_add_rtn_u32 v%d, v%d, v%d offset:%d" % (vX0 + 2, vX0 + 1, vX0, C8))
    e("s_waitcnt lgkmcnt(0)")
    e("v_readfirstlane_b32 s7, v%d" % (vX0 + 2))
    e("s_nop 3")
    e("s_cmp_lg_u32 s7, 8"); e("s_cbranch_scc1 L_arw")
    e("s_lshl_b32 s6, s%d, 4" % sBt); e("v_mov_b32 v%d, s6" % (vX0 + 2))
    e("buffer_atomic_add v%d, v%d, %s, 0 offen sc0" % (vX0, vX0 + 2, srd(sDBG)))
    e("s_waitcnt vmcnt(0)")
    e("v_add_u32 v%d, 1, v%d" % (vX0, vX0))
    e("ds_write_b32 v%d, v%d offset:%d" % (vX0 + 1, vX0, C9))
    e("L_arw:")
    e("ds_read_b32 v%d, v%d offset:%d" % (vX0 + 2, vX0 + 1, C9))
    e("s_waitcnt lgkmcnt(0)")
    e("v_readfirstlane_b32 s%d, v%d" % (sA, vX0 + 2))
    e("s_nop 3")
    e("s_cmp_eq_u32 s%d, 0" % sA); e("s_cbranch_scc1 L_arw")
    exec_all()
    stamp()
    e("s_cmp_lg_u32 s%d, 32" % sA); e("s_cbranch_scc1 %s" % ("L_st" if stamps else "L_done"))
    e("s_lshl_b32 s6, s%d, 14" % sC)
    e("v_lshlrev_b32 v%d, 4, v0" % vX0)
    for part in range(2):
        for i in range(8):
            if i % 4 == 0:
                e("s_add_u32 s7, s6, %d" % (part * 8192 + (i // 4) * 4096))
            e("buffer_load_dwordx4 %s, v%d, %s, s7 offen offset:%d sc1" % (vr(RING0 + 4 * (part * 8 + i)), vX0, srd(sWS), (i % 4) * 1024))
    for part in range(2):
        e("s_waitcnt vmcnt(%d)" % (8 - 8 * part))
        b0 = RING0 + 32 * part
        for st in (4, 2, 1):
            for i in range(st):
                for d in range(4):
                    e("v_add_f32 v%d, v%d, v%d" % (b0 + 4 * i + d, b0 + 4 * i + d, b0 + 4 * (i + st) + d))
        e("v_permlane32_swap_b32 v%d, v%d" % (b0, b0 + 2))
        e("v_permlane32_swap_b32 v%d, v%d" % (b0 + 1, b0 + 3))
        e("v_add_f32 v%d, v%d, v%d" % (b0, b0, b0 + 2))
        e("v_add_f32 v%d, v%d, v%d" % (b0 + 1, b0 + 1, b0 + 3))
        e("v_permlane16_swap_b32 v%d, v%d" % (b0, b0 + 1))
        e("v_add_f32 v%d, v%d, v%d" % (b0, b0, b0 + 1))
    A, Bq = RING0, RING0 + 32
    bf16r2(A, Bq, vX0 + 1)
    e("v_mul_f32 v%d, v%d, v%d" % (A, A, vGate)); e("v_mul_f32 v%d, v%d, v%d" % (Bq, Bq, vOmg))
    bf16r2(A, Bq, vX0 + 1)
    e("v_add_f32 v%d, v%d, v%d" % (A, A, Bq))
    e("v_cvt_pk_bf16_f32 v%d, v%d, v%d" % (A, A, A))
    e("s_mul_i32 s6, s%d, 576" % sBt); e("s_lshl_b32 s7, s%d, 6" % sW); e("s_add_u32 s6, s6, s7")
    e("v_lshrrev_b32 v%d, 2, v%d" % (vX0, vR16))
    e("v_add3_u32 v%d, v%d, v%d, s6" % (vX0, vX0, vG))
    e("v_lshlrev_b32 v%d, 1, v%d" % (vX0, vX0))
    e("buffer_store_short v%d, v%d, %s, 0 offen" % (A, vX0, srd(sOUT)))
    if stamps:
        e("s_waitcnt vmcnt(0)")
        stamp()
        e("L_st:")
        e("s_lshl_b32 s6, s2, 4"); e("s_add_u32 s6, s6, s%d" % sW); e("s_lshl_b32 s6, s6, 8"); e("s_add_u32 s6, s6, 0x800000")
        e("v_lshlrev_b32 v%d, 2, v0" % vX0)
        e("s_nop 4")
        e("buffer_store_dword v54, v%d, %s, s6 offen" % (vX0, srd(sWS)))
    e("L_done:")
    e("s_endpgm")

    body = a.finish()
    nv = RING0 + 4 * R
    assert nv <= 128 and 16 <= R
    out = [HDR.rstrip(), "; @launch grid=(256,1,1) block=(1024,1,1) lds=%d" % LDS_BYTES,
           '.amdgcn_target "amdgcn-amd-amdhsa--gfx950"', ".text", ".globl %s" % KN, ".p2align 8",
           ".type %s,@function" % KN, "%s:" % KN] + body + [
           '.section .rodata,"a"', ".p2align 6", ".amdhsa_kernel %s" % KN,
           "  .amdhsa_next_free_vgpr 128", "  .amdhsa_next_free_sgpr 102", "  .amdhsa_accum_offset 128",
           "  .amdhsa_group_segment_fixed_size 0", "  .amdhsa_kernarg_size 104", "  .amdhsa_user_sgpr_count 2",
           "  .amdhsa_user_sgpr_kernarg_segment_ptr 1", "  .amdhsa_system_sgpr_workgroup_id_x 1", ".end_amdhsa_kernel"]
    return "\n".join(out) + "\n"

if __name__ == "__main__":
    dst = sys.argv[1] if len(sys.argv) > 1 else "gated_mix__mha_block_cached__glu_gated_geglu__decode.s"
    kw = {}
    for x in sys.argv[2:]:
        k, v = x.split("=")
        kw[k] = int(v)
    open(dst, "w").write(gen(**kw))
    print("wrote", dst, "LDS", LDS_BYTES)
```

```python
import sys, struct
from asmlib import Asm
REF = open("gated_mix__mha_block_cached__glu_gated_geglu__decode.s.ref").read()
HDR = REF.split("; Override launch")[0]
KN = "gated_mix__mha_block_cached__glu_gated_geglu__decode_kernel"

def f32(x):
    return "0x%08x" % struct.unpack("<I", struct.pack("<f", x))[0]

vLane, vKV, vR16, vG = 0, 1, 2, 3
vMask = 4
vQ = 8
vXc, vM, vL, vGate, vOmg, vW, vT0, vT1 = 12, 13, 14, 15, 16, 17, 18, 19
vO = 20
vB = 24
vAcc = 32
vS = 32
vT = 40
vU = 44
vN, vAl = 46, 47
vX0 = 48
RING0 = 56
sW, sBt, sH = 3, 4, 5
sK, sV, sWQ, sWG, sWU, sWD, sWO = 8, 12, 16, 20, 24, 28, 32
pX, pK, pV, pWQ, pWO, pBX, pWG, pWU, pWD, pGW, pOUT, pDBG, pWS = 36, 38, 40, 42, 44, 46, 48, 50, 52, 54, 56, 58, 60
sX, sGW, sWS, sOUT, sDBG = 64, 68, 72, 76, 80
sKV, sOff, sTmp = 84, 85, 86
sR = 88
sA, sB2, sC = 92, 93, 94
sScale, sLog2e = 96, 97
sWsOff = 98
sHi = 99
QP = 0
QB = 8192
C8 = QB + 256
C9 = QB + 260
HB = QB + 512
OP = HB + 512
ML = OP + 8448
GU = ML + 128
DP = GU + 24576
AP = DP + 40960
LDS_BYTES = AP + 40960

def srd(x):
    return "s[%d:%d]" % (x, x + 3)
def vr(x, n=4):
    return "v[%d:%d]" % (x, x + n - 1)

class Item:
    def __init__(self, issue, consume=None, pre=None, post=None, defer=False):
        self.issue = issue; self.consume = consume; self.pre = pre; self.post = post; self.defer = defer
        self.op = None

def gen(R=18, stamps=False, dbg=False, wnt=0, noffn=0, nomap=0, pat=0, ga=0, da=2, sync=0):
    WF = ' nt' if wnt else ''
    a = Asm(); e = a.e
    NB = 8
    def make_srd(d, p, off_sgpr, size):
        if off_sgpr is None:
            e("s_mov_b32 s%d, s%d" % (d, p)); e("s_and_b32 s%d, s%d, 0xffff" % (d + 1, p + 1))
        else:
            e("s_add_u32 s%d, s%d, s%d" % (d, p, off_sgpr)); e("s_addc_u32 s%d, s%d, 0" % (d + 1, p + 1))
            e("s_and_b32 s%d, s%d, 0xffff" % (d + 1, d + 1))
        e("s_mov_b32 s%d, 0x%x" % (d + 2, size)); e("s_mov_b32 s%d, 0x20000" % (d + 3))
    def exec_lo32():
        e("s_mov_b32 exec_lo, -1"); e("s_mov_b32 exec_hi, 0")
    def exec_all():
        e("s_mov_b64 exec, -1")
    def bf16r2(x, y, t):
        e("v_cvt_pk_bf16_f32 v%d, v%d, v%d" % (t, x, y))
        e("v_lshlrev_b32 v%d, 16, v%d" % (x, t))
        e("v_and_b32 v%d, s%d, v%d" % (y, sHi, t))
    def bf16r(x):
        e("v_cvt_pk_bf16_f32 v%d, v%d, v%d" % (x, x, x))
        e("v_lshlrev_b32 v%d, 16, v%d" % (x, x))
    def row_allreduce(op, regs):
        for sh in (1, 2, 4, 8):
            for r in regs:
                e("%s_dpp v%d, v%d, v%d row_ror:%d row_mask:0xf bank_mask:0xf" % (op, r, r, r, sh))
    def cross_row(op, x, init=None):
        for k in range(4):
            e("v_readlane_b32 s%d, v%d, %d" % (sR + k, x, 16 * k))
        if init is None:
            e("v_mov_b32 v%d, s%d" % (x, sR))
            ks = (1, 2, 3)
        else:
            e("%s v%d, s%d, v%d" % (op, x, sR, init))
            ks = (1, 2, 3)
        for k in ks:
            e("%s v%d, s%d, v%d" % (op, x, sR + k, x))
    def buildB(bset, coef, lane=None):
        for w in range(4):
            if lane is None:
                e("v_and_b32 v%d, v%d, v%d" % (vB + 4 * bset + w, coef, vMask + w))
            else:
                e("v_and_b32_dpp v%d, v%d, v%d row_newbcast:%d row_mask:0xf bank_mask:0xf" % (vB + 4 * bset + w, coef, vMask + w, lane))
    def mfma(acc, bset, slot, first=False):
        e("v_mfma_f32_16x16x32_bf16 %s, %s, %s, %s" % (vr(acc), vr(vB + 4 * bset), vr(slot), "0" if first else vr(acc)))
    def barrier():
        e("s_waitcnt lgkmcnt(0)"); e("s_barrier")
    lab = [0]
    nst = [0]
    def stamp():
        if not stamps: return
        k = nst[0]; nst[0] += 1
        e("s_memrealtime s[100:101]")
        e("s_waitcnt lgkmcnt(0)")
        e("v_writelane_b32 v54, s100, %d" % k)
    def newlabel(s):
        lab[0] += 1
        return "L_%s_%d" % (s, lab[0])

    e("s_cmp_ge_u32 s2, 256"); e("s_cbranch_scc1 L_done")
    e("s_load_dwordx16 s[36:51], s[0:1], 0")
    e("s_load_dwordx8 s[52:59], s[0:1], 64")
    e("s_load_dwordx2 s[60:61], s[0:1], 96")
    e("v_lshrrev_b32 v%d, 6, v0" % vW)
    e("v_and_b32 v0, 63, v0")
    e("v_readfirstlane_b32 s%d, v%d" % (sW, vW))
    e("s_and_b32 s6, s2, 7"); e("s_lshr_b32 s7, s2, 3"); e("s_and_b32 s%d, s7, 3" % sH)
    e("s_lshl_b32 s6, s6, 2"); e("s_add_u32 s%d, s%d, s6" % (sH, sH)); e("s_lshr_b32 s%d, s7, 2" % sBt)
    if nomap:
        e("s_and_b32 s%d, s2, 31" % sH); e("s_lshr_b32 s%d, s2, 5" % sBt)
    e("s_mov_b32 s%d, %s" % (sScale, f32(128 ** -0.5)))
    e("s_mov_b32 s%d, %s" % (sLog2e, f32(1.4426950408889634)))
    e("s_mov_b32 s%d, 0xffff0000" % sHi)
    if stamps: e("v_mov_b32 v54, 0")
    e("v_and_b32 v%d, 15, v0" % vT0)
    e("v_lshrrev_b32 v%d, 4, v0" % vG)
    e("v_lshlrev_b32 v%d, 4, v%d" % (vR16, vT0))
    e("v_lshlrev_b32 v%d, 4, v0" % vKV)
    e("s_lshl_b32 s6, s%d, %d" % (sW, {0: 13, 1: 16, 2: 14, 3: 15, 4: 12, 5: 10, 6: 11}[pat]))
    e("v_add_u32 v%d, s6, v%d" % (vKV, vKV))
    e("s_mul_i32 s7, s%d, 36" % sW)
    e("v_min_u32 v%d, 8, v%d" % (vT1, vT0))
    e("v_lshl_add_u32 v%d, v%d, 2, v%d" % (vT1, vT1, vG))
    e("v_add_u32 v%d, s7, v%d" % (vT1, vT1))
    e("v_lshlrev_b32 v%d, 1, v%d" % (vT1, vT1))
    e("v_add_u32 v%d, s7, v%d" % (vW, vG))
    e("v_lshlrev_b32 v%d, 13, v%d" % (vW, vW))
    e("v_add_u32 v%d, v%d, v%d" % (vW, vW, vR16))
    e("s_lshl_b32 s%d, s%d, 5" % (sKV, sBt)); e("s_add_u32 s%d, s%d, s%d" % (sKV, sKV, sH)); e("s_lshl_b32 s%d, s%d, 20" % (sKV, sKV))
    e("s_mul_i32 s%d, s%d, 1152" % (sA, sBt))
    e("s_lshl_b32 s%d, s%d, 8" % (sB2, sH))
    e("s_waitcnt lgkmcnt(0)")
    stamp()
    make_srd(sX, pX, sA, 1152)
    opx = a.vmem("buffer_load_ushort v%d, v%d, %s, 0 offen" % (vXc, vT1, srd(sX)))
    make_srd(sWQ, pWQ, sB2, 575 * 8192 + 256)
    make_srd(sK, pK, None, 0x10000000)
    make_srd(sV, pV, None, 0x10000000)

    late = []

    stream = []
    state = {"soff": None, "wtype": "wq"}
    def soff(val):
        if val == 0:
            return "0"
        if state["soff"] != val:
            e("s_mov_b32 s%d, 0x%x" % (sTmp, val)); state["soff"] = val
        return "s%d" % sTmp
    def kvsoff(val):
        if state.get("kv") != val:
            e("s_add_u32 s%d, s%d, 0x%x" % (sOff, sKV, val)); state["kv"] = val
        return "s%d" % sOff

    def wq_item(i):
        def issue(s):
            return a.vmem(("buffer_load_dwordx4 %s, v%d, %s, %s offen" + WF) % (vr(s), vW, srd(sWQ), soff(i * 32768)))
        def pre():
            if i == 0:
                a.wait_vm(opx)
                e("v_lshl_or_b32 v%d, v%d, 16, v%d" % (vXc, vXc, vXc))
            buildB(i & 1, vXc, i)
        def consume(s):
            mfma(vAcc, i & 1, s, first=(i == 0))
        def post():
            if i != 8: return
            e("s_lshl_b32 s6, s%d, 9" % sW)
            e("v_lshlrev_b32 v%d, 1, v%d" % (vT0, vR16))
            e("v_lshl_add_u32 v%d, v%d, 4, v%d" % (vT0, vG, vT0))
            e("v_add_u32 v%d, s6, v%d" % (vT1, vT0))
            exec_lo32()
            e("ds_write_b128 v%d, %s offset:%d" % (vT1, vr(vAcc), QP))
            exec_all()
            barrier()
            L = newlabel("qred")
            e("s_cmp_ge_u32 s%d, 2" % sW); e("s_cbranch_scc1 %s" % L)
            e("s_lshl_b32 s6, s%d, 6" % sW)
            e("v_add_u32 v%d, s6, v0" % vT1)
            e("v_lshlrev_b32 v%d, 2, v%d" % (vX0, vT1))
            for w in range(16):
                e("ds_read_b32 v%d, v%d offset:%d" % (vAcc + w, vX0, QP + 512 * w))
            e("s_waitcnt lgkmcnt(0)")
            for st in (8, 4, 2, 1):
                for w in range(st):
                    e("v_add_f32 v%d, v%d, v%d" % (vAcc + w, vAcc + w, vAcc + w + st))
            e("v_cvt_pk_bf16_f32 v%d, v%d, v%d" % (vAcc, vAcc, vAcc))
            e("v_lshlrev_b32 v%d, 1, v%d" % (vT1, vT1))
            e("ds_write_b16 v%d, v%d offset:%d" % (vT1, vAcc, QB))
            e("%s:" % L)
            barrier()
            e("ds_read_b128 %s, v%d offset:%d" % (vr(vQ), vR16, QB))
            e("s_waitcnt lgkmcnt(0)")
            if dbg:
                e("buffer_store_dwordx4 %s, v%d, %s, s95 offen" % (vr(vQ), vR16, srd(sWS)))
            stamp()
        return Item(issue, consume, pre, post)
    for i in range(9):
        stream.append(wq_item(i))

    BANK_OF = {0: 0, 1: 2, 2: 1, 3: 3}
    def boff(t):
        return {0: t * 131072, 1: t * 8192, 2: (t >> 1) * 262144 + (t & 1) * 8192, 3: (t >> 2) * 524288 + (t & 3) * 8192}[pat]
    def kvaddr(t, i):
        if pat == 4: return t * 131072 + (i // 4) * 65536, (i % 4) * 1024
        if pat == 5: return t * 131072 + i * 16384, 0
        if pat == 6: return t * 131072 + (i // 2) * 32768, (i % 2) * 1024
        return boff(t) + (i // 4) * 4096, (i % 4) * 1024
    def k_item(t, i):
        def issue(s):
            o, im = kvaddr(t, i)
            so = kvsoff(o)
            return a.vmem("buffer_load_dwordx4 %s, v%d, %s, %s offen offset:%d nt" % (vr(s), vKV, srd(sK), so, im))
        def consume(s):
            e("v_dot2_f32_bf16 v%d, v%d, v%d, 0" % (vS + i, s, vQ))
            for d in (1, 2, 3):
                e("v_dot2_f32_bf16 v%d, v%d, v%d, v%d" % (vS + i, s + d, vQ + d, vS + i))
        def post():
            if i != 7: return
            for half in (0, 1):
                s0 = vS + 4 * half; t0 = vT + 2 * half
                e("v_add_f32_dpp v%d, v%d, v%d row_ror:8 row_mask:0xf bank_mask:0x3" % (t0, s0, s0))
                e("v_add_f32_dpp v%d, v%d, v%d row_ror:8 row_mask:0xf bank_mask:0xc" % (t0, s0 + 1, s0 + 1))
                e("v_add_f32_dpp v%d, v%d, v%d row_ror:8 row_mask:0xf bank_mask:0x3" % (t0 + 1, s0 + 2, s0 + 2))
                e("v_add_f32_dpp v%d, v%d, v%d row_ror:8 row_mask:0xf bank_mask:0xc" % (t0 + 1, s0 + 3, s0 + 3))
            for half in (0, 1):
                t0 = vT + 2 * half
                e("v_add_f32_dpp v%d, v%d, v%d row_half_mirror row_mask:0xf bank_mask:0x5" % (vU + half, t0, t0))
                e("v_add_f32_dpp v%d, v%d, v%d row_half_mirror row_mask:0xf bank_mask:0xa" % (vU + half, t0 + 1, t0 + 1))
            for qp in ("[1,0,3,2]", "[2,3,0,1]"):
                for half in (0, 1):
                    e("v_add_f32_dpp v%d, v%d, v%d quad_perm:%s row_mask:0xf bank_mask:0xf" % (vU + half, vU + half, vU + half, qp))
            bf16r2(vU, vU + 1, vT)
            e("v_mul_f32 v%d, s%d, v%d" % (vU, sScale, vU)); e("v_mul_f32 v%d, s%d, v%d" % (vU + 1, sScale, vU + 1))
            bf16r2(vU, vU + 1, vT)
            e("v_max_f32 v%d, v%d, v%d" % (vN, vU, vU + 1))
            e("v_max_f32_dpp v%d, v%d, v%d row_ror:4 row_mask:0xf bank_mask:0xf" % (vN, vN, vN))
            e("v_max_f32_dpp v%d, v%d, v%d row_ror:8 row_mask:0xf bank_mask:0xf" % (vN, vN, vN))
            cross_row("v_max_f32", vN, init=vM)
            e("v_sub_f32 v%d, v%d, v%d" % (vAl, vM, vN))
            e("v_sub_f32 v%d, v%d, v%d" % (vU, vU, vN))
            e("v_sub_f32 v%d, v%d, v%d" % (vU + 1, vU + 1, vN))
            for r in (vAl, vU, vU + 1):
                e("v_mul_f32 v%d, s%d, v%d" % (r, sLog2e, r))
            for r in (vAl, vU, vU + 1):
                e("v_exp_f32 v%d, v%d" % (r, r))
            e("v_mov_b32 v%d, v%d" % (vM, vN))
            e("v_fma_f32 v%d, v%d, v%d, v%d" % (vL, vL, vAl, vU))
            e("v_add_f32 v%d, v%d, v%d" % (vL, vL, vU + 1))
            for k in range(4):
                e("v_mul_f32 v%d, v%d, v%d" % (vO + k, vO + k, vAl))
            e("v_cvt_pk_bf16_f32 v%d, v%d, v%d" % (vU, vU, vU))
            e("v_cvt_pk_bf16_f32 v%d, v%d, v%d" % (vU + 1, vU + 1, vU + 1))
            stamp()
        return Item(issue, consume, None, post)
    def v_item(t, i):
        def issue(s):
            o, im = kvaddr(t, i)
            so = kvsoff(o)
            return a.vmem("buffer_load_dwordx4 %s, v%d, %s, %s offen offset:%d nt" % (vr(s), vKV, srd(sV), so, im))
        def pre():
            buildB(i & 1, vU + (i >> 2), 4 * BANK_OF[i & 3])
        def consume(s):
            mfma(vO, i & 1, s)
        def post():
            if i == 7 and (sync >> t) & 1: e("s_barrier")
        return Item(issue, consume, pre, post)
    def add_kv(t):
        for i in range(8): stream.append(k_item(t, i))
        for i in range(8): stream.append(v_item(t, i))

    gslots = []
    def gv_item(j):
        def issue(s):
            if j == 0:
                e("v_lshlrev_b32 v%d, 4, v0" % vW)
            return a.vmem("buffer_load_dwordx4 %s, v%d, %s, 0 offen offset:%d" % (vr(s), vW, srd(sX if j < 2 else sGW), (j & 1) * 1024))
        def consume(s):
            gslots.append(s)
            if j != 3: return
            acc = vAcc; x0, x1, g0, g1, pk = vAcc + 1, vAcc + 2, vAcc + 3, vAcc + 4, vAcc + 5
            e("v_mov_b32 v%d, 0" % acc)
            for p in (0, 1):
                for d in range(4):
                    xs = gslots[p] + d; gs = gslots[2 + p] + d
                    e("v_lshlrev_b32 v%d, 16, v%d" % (x0, xs)); e("v_and_b32 v%d, s%d, v%d" % (x1, sHi, xs))
                    e("v_lshlrev_b32 v%d, 16, v%d" % (g0, gs)); e("v_and_b32 v%d, s%d, v%d" % (g1, sHi, gs))
                    e("v_mul_f32 v%d, v%d, v%d" % (x0, x0, g0)); e("v_mul_f32 v%d, v%d, v%d" % (x1, x1, g1))
                    bf16r2(x0, x1, pk)
                    e("v_add_f32 v%d, v%d, v%d" % (acc, acc, x0)); e("v_add_f32 v%d, v%d, v%d" % (acc, acc, x1))
            row_allreduce("v_add_f32", [acc])
            cross_row("v_add_f32", acc)
            bf16r(acc)
            e("v_mul_f32 v%d, s%d, v%d" % (acc, sLog2e, acc))
            e("v_sub_f32 v%d, 0, v%d" % (acc, acc))
            e("v_exp_f32 v%d, v%d" % (acc, acc))
            e("v_add_f32 v%d, 1.0, v%d" % (acc, acc))
            e("v_rcp_f32 v%d, v%d" % (vGate, acc))
            bf16r(vGate)
            e("v_sub_f32 v%d, 1.0, v%d" % (vOmg, vGate))
            bf16r(vOmg)
        return Item(issue, consume, None, None, defer=(j != 3))

    def gu_item(i, which):
        def issue(s):
            if i == 0 and which == 0:
                e("s_mul_i32 s7, s%d, 36" % sW)
                e("v_add_u32 v%d, s7, v%d" % (vW, vG))
                e("v_mul_u32_u24 v%d, 9216, v%d" % (vW, vW))
                e("v_and_b32 v%d, 16, v%d" % (vX0 + 7, vR16))
                e("v_add3_u32 v%d, v%d, v%d, 64" % (vX0 + 7, vX0 + 7, vW))
                e("v_add_u32 v%d, 192, v%d" % (vX0 + 7, vX0 + 7))
                e("v_add_u32 v%d, v%d, v%d" % (vW, vW, vR16))
            so = soff(i * 36864)
            if which < 2:
                return a.vmem(("buffer_load_dwordx4 %s, v%d, %s, %s offen" + WF) % (vr(s), vW, srd(sWG if which == 0 else sWU), so))
            e("s_mov_b32 exec_lo, 0x00030003"); e("s_mov_b32 exec_hi, 0x00030003")
            a.vmem(("buffer_load_dwordx4 %s, v%d, %s, %s offen" + WF) % (vr(s), vX0 + 7, srd(sWG), so))
            e("s_mov_b32 exec_lo, 0x000c000c"); e("s_mov_b32 exec_hi, 0x000c000c")
            op = a.vmem(("buffer_load_dwordx4 %s, v%d, %s, %s offen" + WF) % (vr(s), vX0 + 7, srd(sWU), so))
            exec_all()
            return op
        def pre():
            if which == 0:
                buildB(i & 1, vXc, i)
        def consume(s):
            mfma(vAcc + 4 * which, i & 1, s, first=(i == 0))
        def post():
            if not (i == 8 and which == 2): return
            e("s_mul_i32 s6, s%d, 1536" % sW)
            e("v_add_u32 v%d, s6, v%d" % (vT1, vT0))
            exec_lo32()
            for c in range(3):
                e("ds_write_b128 v%d, %s offset:%d" % (vT1, vr(vAcc + 4 * c), GU + 512 * c))
            exec_all()
            barrier()
            L = newlabel("hred")
            e("s_cmp_ge_u32 s%d, 3" % sW); e("s_cbranch_scc1 %s" % L)
            e("s_lshl_b32 s6, s%d, 6" % sW)
            e("v_add_u32 v%d, s6, v0" % vT1)
            e("s_cmp_eq_u32 s%d, 2" % sW)
            e("s_cselect_b32 s6, 512, 0"); e("s_cselect_b32 s7, 64, 0"); e("s_add_u32 s7, s7, 512")
            e("v_lshlrev_b32 v%d, 2, v%d" % (vX0, vT1))
            e("v_add_u32 v%d, s7, v%d" % (vX0 + 1, vX0))
            e("v_add_u32 v%d, s6, v%d" % (vX0, vX0))
            for base, ad, dst in ((0, vX0, vX0 + 2), (0, vX0 + 1, vX0 + 3)):
                for w in range(16):
                    e("ds_read_b32 v%d, v%d offset:%d" % (vAcc + w, ad, GU + 1536 * w))
                e("s_waitcnt lgkmcnt(0)")
                for st in (8, 4, 2):
                    for w in range(st):
                        e("v_add_f32 v%d, v%d, v%d" % (vAcc + w, vAcc + w, vAcc + w + st))
                e("v_add_f32 v%d, v%d, v%d" % (dst, vAcc, vAcc + 1))
            g, u = vX0 + 2, vX0 + 3
            bf16r2(g, u, vAcc)
            y = vAcc
            c0 = 0.7978845608028654; c1 = c0 * 0.044715
            e("v_mul_f32 v%d, v%d, v%d" % (y, g, g))
            e("s_mov_b32 s6, %s" % f32(c1)); e("v_mov_b32 v%d, %s" % (vAcc + 1, f32(c0)))
            e("v_fma_f32 v%d, v%d, s6, v%d" % (y, y, vAcc + 1))
            e("v_mul_f32 v%d, v%d, v%d" % (y, y, g))
            e("v_mul_f32 v%d, %s, v%d" % (y, f32(-2.0 * 1.4426950408889634), y))
            e("v_exp_f32 v%d, v%d" % (y, y))
            e("v_add_f32 v%d, 1.0, v%d" % (y, y))
            e("v_rcp_f32 v%d, v%d" % (y, y))
            e("v_mul_f32 v%d, v%d, v%d" % (y, y, g))
            bf16r(y)
            e("v_mul_f32 v%d, v%d, v%d" % (y, y, u))
            if dbg:
                e("v_lshlrev_b32 v%d, 2, v%d" % (vAcc + 2, vT1))
                e("buffer_store_dword v%d, v%d, %s, s95 offen offset:1024" % (y, vAcc + 2, srd(sWS)))
                e("buffer_store_dword v%d, v%d, %s, s95 offen offset:2048" % (g, vAcc + 2, srd(sWS)))
                e("s_nop 3")
            e("v_cvt_pk_bf16_f32 v%d, v%d, v%d" % (y, y, y))
            e("v_cmp_gt_u32 vcc, 144, v%d" % vT1)
            e("v_cndmask_b32 v%d, 0, v%d, vcc" % (y, y))
            e("v_lshlrev_b32 v%d, 1, v%d" % (vT1, vT1))
            e("ds_write_b16 v%d, v%d offset:%d" % (vT1, y, HB))
            e("%s:" % L)
        return Item(issue, consume, pre, post)

    def publish(part, ldsbase):
        e("s_lshl_b32 s6, s%d, 8" % sW)
        e("v_lshl_add_u32 v%d, v0, 2, s6" % vX0)
        if ldsbase + 2560 * 15 > 65535:
            e("v_add_u32 v%d, 0x%x, v%d" % (vX0 + 1, ldsbase, vX0)); ad = vX0 + 1; lb = 0
        else:
            ad = vX0; lb = ldsbase
        for w in range(16):
            e("ds_read_b32 v%d, v%d offset:%d" % (vAcc + w, ad, lb + 2560 * w))
        e("s_waitcnt lgkmcnt(0)")
        for st in (8, 4, 2, 1):
            for w in range(st):
                e("v_add_f32 v%d, v%d, v%d" % (vAcc + w, vAcc + w, vAcc + w + st))
        e("v_lshlrev_b32 v%d, 2, v0" % vX0)
        e("s_add_u32 s6, s%d, %d" % (sWsOff, part * 8192))
        return "buffer_store_dword v%d, v%d, %s, s6 offen sc1" % (vAcc, vX0, srd(sWS))

    def write_out_partials(ldsbase):
        e("s_mul_i32 s6, s%d, 2560" % sW)
        e("s_add_u32 s6, s6, %d" % ldsbase)
        e("v_add_u32 v%d, s6, v%d" % (vT1, vT0))
        exec_lo32()
        for c in range(5):
            e("ds_write_b128 v%d, %s offset:%d" % (vT1, vr(vAcc + 4 * c), 512 * c))
        exec_all()

    def dn_item(i, c):
        def issue(s):
            if i == 0 and c == 0:
                e("s_lshl_b32 s7, s%d, 2" % sW)
                e("v_add_u32 v%d, s7, v%d" % (vW, vG))
                e("v_mul_u32_u24 v%d, 1152, v%d" % (vW, vW))
                e("v_add_u32 v%d, v%d, v%d" % (vW, vW, vR16))
            return a.vmem(("buffer_load_dwordx4 %s, v%d, %s, %s offen offset:%d" + WF) % (vr(s), vW, srd(sWD), soff(i * 73728), c * 256))
        def pre():
            if i == 0 and c == 0:
                barrier()
                e("v_lshrrev_b32 v%d, 4, v%d" % (vT1, vR16))
                e("v_min_u32 v%d, 2, v%d" % (vT1, vT1))
                e("v_lshl_add_u32 v%d, v%d, 6, v%d" % (vT1, vT1, vG))
                e("s_lshl_b32 s7, s%d, 2" % sW)
                e("v_add_u32 v%d, s7, v%d" % (vT1, vT1))
                e("v_lshlrev_b32 v%d, 1, v%d" % (vT1, vT1))
                e("ds_read_u16 v%d, v%d offset:%d" % (vXc, vT1, HB))
                e("s_waitcnt lgkmcnt(0)")
                e("v_lshl_or_b32 v%d, v%d, 16, v%d" % (vXc, vXc, vXc))
            if c == 0:
                buildB(i & 1, vXc, i)
        def consume(s):
            mfma(vAcc + 4 * c, i & 1, s, first=(i == 0))
        def post():
            if not (i == 2 and c == 4): return
            write_out_partials(DP)
            barrier()
            L = newlabel("bpub")
            e("s_cmp_ge_u32 s%d, 9" % sW); e("s_cbranch_scc1 %s" % L)
            e(publish(1, DP))
            e("%s:" % L)
        return Item(issue, consume, pre, post)

    vOc = vX0 + 4
    def wo_item(i, c):
        def issue(s):
            if i == 0 and c == 0:
                e("s_lshl_b32 s7, s%d, 3" % sW)
                e("v_add_u32 v%d, s7, v%d" % (vW, vG))
                e("v_mul_u32_u24 v%d, 1152, v%d" % (vW, vW))
                e("v_add_u32 v%d, v%d, v%d" % (vW, vW, vR16))
            return a.vmem(("buffer_load_dwordx4 %s, v%d, %s, %s offen offset:%d" + WF) % (vr(s), vW, srd(sWO), soff(i * 4608), c * 256))
        def pre():
            if i == 0 and c == 0:
                stamp()
                e("v_add_f32_dpp v%d, v%d, v%d row_ror:4 row_mask:0xf bank_mask:0xf" % (vL, vL, vL))
                e("v_add_f32_dpp v%d, v%d, v%d row_ror:8 row_mask:0xf bank_mask:0xf" % (vL, vL, vL))
                cross_row("v_add_f32", vL)
                e("s_mul_i32 s6, s%d, 528" % sW)
                e("v_add_u32 v%d, s6, v%d" % (vT1, vT0))
                exec_lo32()
                e("ds_write_b128 v%d, %s offset:%d" % (vT1, vr(vO), OP))
                e("s_mov_b32 exec_lo, 1")
                e("s_lshl_b32 s6, s%d, 3" % sW)
                e("v_mov_b32 v%d, s6" % vT1)
                e("v_mov_b32 v%d, v%d" % (vX0, vM)); e("v_mov_b32 v%d, v%d" % (vX0 + 1, vL))
                e("ds_write_b64 v%d, %s offset:%d" % (vT1, vr(vX0, 2), ML))
                exec_all()
                barrier()
                e("v_lshrrev_b32 v%d, 1, v%d" % (vT1, vR16))
                e("ds_read_b64 %s, v%d offset:%d" % (vr(vX0, 2), vT1, ML))
                e("v_lshrrev_b32 v%d, 4, v%d" % (vT1, vR16))
                e("v_mul_u32_u24 v%d, 528, v%d" % (vT1, vT1))
                e("v_lshl_add_u32 v%d, v%d, 2, v%d" % (vT1, vG, vT1))
                e("s_lshl_b32 s6, s%d, 5" % sW)
                e("v_add_u32 v%d, s6, v%d" % (vT1, vT1))
                e("ds_read_b32 v%d, v%d offset:%d" % (vOc, vT1, OP))
                e("ds_read_b32 v%d, v%d offset:%d" % (vOc + 1, vT1, OP + 16))
                e("s_waitcnt lgkmcnt(0)")
                mr, lr, mm = vX0, vX0 + 1, vX0 + 2
                e("v_mov_b32 v%d, v%d" % (mm, mr))
                row_allreduce("v_max_f32", [mm])
                e("v_sub_f32 v%d, v%d, v%d" % (mr, mr, mm))
                e("v_mul_f32 v%d, s%d, v%d" % (mr, sLog2e, mr))
                e("v_exp_f32 v%d, v%d" % (mr, mr))
                for r in (lr, vOc, vOc + 1):
                    e("v_mul_f32 v%d, v%d, v%d" % (r, r, mr))
                row_allreduce("v_add_f32", [lr, vOc, vOc + 1])
                e("v_rcp_f32 v%d, v%d" % (lr, lr))
                for r in (vOc, vOc + 1):
                    e("v_mul_f32 v%d, v%d, v%d" % (r, r, lr))
                if dbg:
                    e("s_lshl_b32 s6, s%d, 5" % sW)
                    e("v_lshl_add_u32 v%d, v%d, 2, s6" % (vT1, vG))
                    e("buffer_store_dword v%d, v%d, %s, s95 offen offset:3072" % (vOc, vT1, srd(sWS)))
                    e("buffer_store_dword v%d, v%d, %s, s95 offen offset:3088" % (vOc + 1, vT1, srd(sWS)))
                    e("s_nop 3")
                for r in (vOc, vOc + 1):
                    e("v_cvt_pk_bf16_f32 v%d, v%d, v%d" % (r, r, r))
                buildB(0, vOc); buildB(1, vOc + 1)
                stamp()
        def consume(s):
            mfma(vAcc + 4 * c, i & 1, s, first=(i == 0))
        return Item(issue, consume, pre, None)

    for t in range(NB):
        add_kv(t)
        if t == ga:
            for j in range(4): stream.append(gv_item(j))
            for i in range(9):
                for which in range(3): stream.append(gu_item(i, which))
        if t == da:
            for i in range(3):
                for c in range(5): stream.append(dn_item(i, c))
    for i in range(2):
        for c in range(5): stream.append(wo_item(i, c))

    n = len(stream)
    slot = lambda p: RING0 + 4 * (p % R)
    for p in range(R):
        stream[p].op = stream[p].issue(slot(p))
    e("v_and_b32 v%d, 16, v%d" % (vT1, vR16))
    e("v_mov_b32 v%d, 0xffff" % vT0)
    e("v_lshlrev_b32 v%d, v%d, v%d" % (vT0, vT1, vT0))
    e("v_lshrrev_b32 v%d, 5, v%d" % (vT1, vR16))
    for w in range(4):
        e("v_cmp_eq_u32 vcc, %d, v%d" % (w, vT1))
        e("v_cndmask_b32 v%d, 0, v%d, vcc" % (vMask + w, vT0))
    e("s_mul_i32 s%d, s%d, 288" % (sA, sH))
    make_srd(sWG, pWG, sA, 575 * 9216 + 288)
    make_srd(sWU, pWU, sA, 575 * 9216 + 288)
    e("s_mul_i32 s%d, s%d, %d" % (sA, sH, 144 * 1152))
    make_srd(sWD, pWD, sA, 144 * 1152)
    e("s_mul_i32 s%d, s%d, %d" % (sA, sH, 128 * 1152))
    make_srd(sWO, pWO, sA, 128 * 1152)
    make_srd(sGW, pGW, None, 1152)
    make_srd(sWS, pWS, None, (64 << 20) if (dbg or stamps) else 8 * 9 * 2 * 32 * 256)
    if dbg:
        e("s_lshl_b32 s95, s%d, 5" % sBt); e("s_add_u32 s95, s95, s%d" % sH); e("s_lshl_b32 s95, s95, 12"); e("s_add_u32 s95, s95, 0x400000")
    make_srd(sOUT, pOUT, None, 4608 * 2)
    make_srd(sDBG, pDBG, None, 256)
    e("s_mul_i32 s%d, s%d, 9" % (sC, sBt)); e("s_add_u32 s%d, s%d, s%d" % (sC, sC, sW))
    e("s_lshl_b32 s%d, s%d, 6" % (sWsOff, sC)); e("s_add_u32 s%d, s%d, s%d" % (sWsOff, sWsOff, sH))
    e("s_lshl_b32 s%d, s%d, 8" % (sWsOff, sWsOff))
    e("v_mov_b32 v%d, 0" % vT1)
    e("ds_write_b32 v%d, v%d offset:%d" % (vT1, vT1, C8))
    e("ds_write_b32 v%d, v%d offset:%d" % (vT1, vT1, C9))
    e("v_mov_b32 v%d, 0xff7fffff" % vM)
    e("v_mov_b32 v%d, 0" % vL)
    for k in range(4): e("v_mov_b32 v%d, 0" % (vO + k))

    pend = []
    for p in range(n):
        it = stream[p]
        if it.pre: it.pre()
        a.wait_vm(it.op)
        if it.consume: it.consume(slot(p))
        pend.append(p)
        if not it.defer:
            for q in pend:
                if q + R < n:
                    stream[q + R].op = stream[q + R].issue(slot(q))
            pend = []
        if it.post: it.post()

    write_out_partials(AP)
    barrier()
    stamp()
    e("s_cmp_ge_u32 s%d, 9" % sW); e("s_cbranch_scc1 %s" % ("L_st" if stamps else "L_done"))
    e(publish(0, AP))
    e("s_waitcnt vmcnt(0)")
    stamp()
    e("v_mov_b32 v%d, 1" % vX0); e("v_mov_b32 v%d, 0" % (vX0 + 1))
    e("s_mov_b32 exec_lo, 1"); e("s_mov_b32 exec_hi, 0")
    e("ds_add_rtn_u32 v%d, v%d, v%d offset:%d" % (vX0 + 2, vX0 + 1, vX0, C8))
    e("s_waitcnt lgkmcnt(0)")
    e("v_readfirstlane_b32 s7, v%d" % (vX0 + 2))
    e("s_nop 3")
    e("s_cmp_lg_u32 s7, 8"); e("s_cbranch_scc1 L_arw")
    e("s_lshl_b32 s6, s%d, 4" % sBt); e("v_mov_b32 v%d, s6" % (vX0 + 2))
    e("buffer_atomic_add v%d, v%d, %s, 0 offen sc0" % (vX0, vX0 + 2, srd(sDBG)))
    e("s_waitcnt vmcnt(0)")
    e("v_add_u32 v%d, 1, v%d" % (vX0, vX0))
    e("ds_write_b32 v%d, v%d offset:%d" % (vX0 + 1, vX0, C9))
    e("L_arw:")
    e("ds_read_b32 v%d, v%d offset:%d" % (vX0 + 2, vX0 + 1, C9))
    e("s_waitcnt lgkmcnt(0)")
    e("v_readfirstlane_b32 s%d, v%d" % (sA, vX0 + 2))
    e("s_nop 3")
    e("s_cmp_eq_u32 s%d, 0" % sA); e("s_cbranch_scc1 L_arw")
    exec_all()
    stamp()
    e("s_cmp_lg_u32 s%d, 32" % sA); e("s_cbranch_scc1 %s" % ("L_st" if stamps else "L_done"))
    e("s_lshl_b32 s6, s%d, 14" % sC)
    e("v_lshlrev_b32 v%d, 4, v0" % vX0)
    for part in range(2):
        for i in range(8):
            if i % 4 == 0:
                e("s_add_u32 s7, s6, %d" % (part * 8192 + (i // 4) * 4096))
            e("buffer_load_dwordx4 %s, v%d, %s, s7 offen offset:%d sc1" % (vr(RING0 + 4 * (part * 8 + i)), vX0, srd(sWS), (i % 4) * 1024))
    for part in range(2):
        e("s_waitcnt vmcnt(%d)" % (8 - 8 * part))
        b0 = RING0 + 32 * part
        for st in (4, 2, 1):
            for i in range(st):
                for d in range(4):
                    e("v_add_f32 v%d, v%d, v%d" % (b0 + 4 * i + d, b0 + 4 * i + d, b0 + 4 * (i + st) + d))
        e("v_permlane32_swap_b32 v%d, v%d" % (b0, b0 + 2))
        e("v_permlane32_swap_b32 v%d, v%d" % (b0 + 1, b0 + 3))
        e("v_add_f32 v%d, v%d, v%d" % (b0, b0, b0 + 2))
        e("v_add_f32 v%d, v%d, v%d" % (b0 + 1, b0 + 1, b0 + 3))
        e("v_permlane16_swap_b32 v%d, v%d" % (b0, b0 + 1))
        e("v_add_f32 v%d, v%d, v%d" % (b0, b0, b0 + 1))
    A, Bq = RING0, RING0 + 32
    bf16r2(A, Bq, vX0 + 1)
    e("v_mul_f32 v%d, v%d, v%d" % (A, A, vGate)); e("v_mul_f32 v%d, v%d, v%d" % (Bq, Bq, vOmg))
    bf16r2(A, Bq, vX0 + 1)
    e("v_add_f32 v%d, v%d, v%d" % (A, A, Bq))
    e("v_cvt_pk_bf16_f32 v%d, v%d, v%d" % (A, A, A))
    e("s_mul_i32 s6, s%d, 576" % sBt); e("s_lshl_b32 s7, s%d, 6" % sW); e("s_add_u32 s6, s6, s7")
    e("v_lshrrev_b32 v%d, 2, v%d" % (vX0, vR16))
    e("v_add3_u32 v%d, v%d, v%d, s6" % (vX0, vX0, vG))
    e("v_lshlrev_b32 v%d, 1, v%d" % (vX0, vX0))
    e("buffer_store_short v%d, v%d, %s, 0 offen" % (A, vX0, srd(sOUT)))
    if stamps:
        e("s_waitcnt vmcnt(0)")
        stamp()
        e("L_st:")
        e("s_lshl_b32 s6, s2, 4"); e("s_add_u32 s6, s6, s%d" % sW); e("s_lshl_b32 s6, s6, 8"); e("s_add_u32 s6, s6, 0x800000")
        e("v_lshlrev_b32 v%d, 2, v0" % vX0)
        e("s_nop 4")
        e("buffer_store_dword v54, v%d, %s, s6 offen" % (vX0, srd(sWS)))
    e("L_done:")
    e("s_endpgm")

    body = a.finish()
    nv = RING0 + 4 * R
    assert nv <= 128 and 16 <= R
    out = [HDR.rstrip(), "; @launch grid=(256,1,1) block=(1024,1,1) lds=%d" % LDS_BYTES,
           '.amdgcn_target "amdgcn-amd-amdhsa--gfx950"', ".text", ".globl %s" % KN, ".p2align 8",
           ".type %s,@function" % KN, "%s:" % KN] + body + [
           '.section .rodata,"a"', ".p2align 6", ".amdhsa_kernel %s" % KN,
           "  .amdhsa_next_free_vgpr 128", "  .amdhsa_next_free_sgpr 102", "  .amdhsa_accum_offset 128",
           "  .amdhsa_group_segment_fixed_size 0", "  .amdhsa_kernarg_size 104", "  .amdhsa_user_sgpr_count 2",
           "  .amdhsa_user_sgpr_kernarg_segment_ptr 1", "  .amdhsa_system_sgpr_workgroup_id_x 1", ".end_amdhsa_kernel"]
    return "\n".join(out) + "\n"

if __name__ == "__main__":
    dst = sys.argv[1] if len(sys.argv) > 1 else "gated_mix__mha_block_cached__glu_gated_geglu__decode.s"
    kw = {}
    for x in sys.argv[2:]:
        k, v = x.split("=")
        kw[k] = int(v)
    open(dst, "w").write(gen(**kw))
    print("wrote", dst, "LDS", LDS_BYTES)
```

```python
import sys, struct
from asmlib import Asm
REF = open("gated_mix__mha_block_cached__glu_gated_geglu__decode.s.ref").read()
HDR = REF.split("; Override launch")[0]
KN = "gated_mix__mha_block_cached__glu_gated_geglu__decode_kernel"

def f32(x):
    return "0x%08x" % struct.unpack("<I", struct.pack("<f", x))[0]

vLane, vKV, vR16, vG = 0, 1, 2, 3
vMask = 4
vQ = 8
vXc, vM, vL, vGate, vOmg, vW, vT0, vT1 = 12, 13, 14, 15, 16, 17, 18, 19
vO = 20
vB = 24
vAcc = 32
vS = 32
vT = 40
vU = 44
vN, vAl = 46, 47
vX0 = 48
RING0 = 56
sW, sBt, sH = 3, 4, 5
sK, sV, sWQ, sWG, sWU, sWD, sWO = 8, 12, 16, 20, 24, 28, 32
pX, pK, pV, pWQ, pWO, pBX, pWG, pWU, pWD, pGW, pOUT, pDBG, pWS = 36, 38, 40, 42, 44, 46, 48, 50, 52, 54, 56, 58, 60
sX, sGW, sWS, sOUT, sDBG = 64, 68, 72, 76, 80
sKV, sOff, sTmp = 84, 85, 86
sR = 88
sA, sB2, sC = 92, 93, 94
sScale, sLog2e = 96, 97
sWsOff = 98
sHi = 99
QP = 0
QB = 8192
C8 = QB + 256
C9 = QB + 260
HB = QB + 512
OP = HB + 512
ML = OP + 8448
GU = ML + 128
DP = GU + 24576
AP = DP + 40960
LDS_BYTES = AP + 40960

def srd(x):
    return "s[%d:%d]" % (x, x + 3)
def vr(x, n=4):
    return "v[%d:%d]" % (x, x + n - 1)

class Item:
    def __init__(self, issue, consume=None, pre=None, post=None, defer=False):
        self.issue = issue; self.consume = consume; self.pre = pre; self.post = post; self.defer = defer
        self.op = None

def gen(R=18, stamps=False, dbg=False, wnt=0, noffn=0, nomap=0, pat=0, ga=0, da=2, sync=0, early=0):
    WF = ' nt' if wnt else ''
    a = Asm(); e = a.e
    NB = 8
    def make_srd(d, p, off_sgpr, size):
        if off_sgpr is None:
            e("s_mov_b32 s%d, s%d" % (d, p)); e("s_and_b32 s%d, s%d, 0xffff" % (d + 1, p + 1))
        else:
            e("s_add_u32 s%d, s%d, s%d" % (d, p, off_sgpr)); e("s_addc_u32 s%d, s%d, 0" % (d + 1, p + 1))
            e("s_and_b32 s%d, s%d, 0xffff" % (d + 1, d + 1))
        e("s_mov_b32 s%d, 0x%x" % (d + 2, size)); e("s_mov_b32 s%d, 0x20000" % (d + 3))
    def exec_lo32():
        e("s_mov_b32 exec_lo, -1"); e("s_mov_b32 exec_hi, 0")
    def exec_all():
        e("s_mov_b64 exec, -1")
    def bf16r2(x, y, t):
        e("v_cvt_pk_bf16_f32 v%d, v%d, v%d" % (t, x, y))
        e("v_lshlrev_b32 v%d, 16, v%d" % (x, t))
        e("v_and_b32 v%d, s%d, v%d" % (y, sHi, t))
    def bf16r(x):
        e("v_cvt_pk_bf16_f32 v%d, v%d, v%d" % (x, x, x))
        e("v_lshlrev_b32 v%d, 16, v%d" % (x, x))
    def row_allreduce(op, regs):
        for sh in (1, 2, 4, 8):
            for r in regs:
                e("%s_dpp v%d, v%d, v%d row_ror:%d row_mask:0xf bank_mask:0xf" % (op, r, r, r, sh))
    def cross_row(op, x, init=None):
        for k in range(4):
            e("v_readlane_b32 s%d, v%d, %d" % (sR + k, x, 16 * k))
        if init is None:
            e("v_mov_b32 v%d, s%d" % (x, sR))
            ks = (1, 2, 3)
        else:
            e("%s v%d, s%d, v%d" % (op, x, sR, init))
            ks = (1, 2, 3)
        for k in ks:
            e("%s v%d, s%d, v%d" % (op, x, sR + k, x))
    def buildB(bset, coef, lane=None):
        for w in range(4):
            if lane is None:
                e("v_and_b32 v%d, v%d, v%d" % (vB + 4 * bset + w, coef, vMask + w))
            else:
                e("v_and_b32_dpp v%d, v%d, v%d row_newbcast:%d row_mask:0xf bank_mask:0xf" % (vB + 4 * bset + w, coef, vMask + w, lane))
    def mfma(acc, bset, slot, first=False):
        e("v_mfma_f32_16x16x32_bf16 %s, %s, %s, %s" % (vr(acc), vr(vB + 4 * bset), vr(slot), "0" if first else vr(acc)))
    def barrier():
        e("s_waitcnt lgkmcnt(0)"); e("s_barrier")
    lab = [0]
    nst = [0]
    def stamp():
        if not stamps: return
        k = nst[0]; nst[0] += 1
        e("s_memrealtime s[100:101]")
        e("s_waitcnt lgkmcnt(0)")
        e("v_writelane_b32 v54, s100, %d" % k)
    def newlabel(s):
        lab[0] += 1
        return "L_%s_%d" % (s, lab[0])

    e("s_cmp_ge_u32 s2, 256"); e("s_cbranch_scc1 L_done")
    if early == 2: e("s_setprio 3")
    e("s_load_dwordx16 s[36:51], s[0:1], 0")
    e("s_load_dwordx8 s[52:59], s[0:1], 64")
    e("s_load_dwordx2 s[60:61], s[0:1], 96")
    e("v_lshrrev_b32 v%d, 6, v0" % vW)
    e("v_and_b32 v0, 63, v0")
    e("v_readfirstlane_b32 s%d, v%d" % (sW, vW))
    e("s_and_b32 s6, s2, 7"); e("s_lshr_b32 s7, s2, 3"); e("s_and_b32 s%d, s7, 3" % sH)
    e("s_lshl_b32 s6, s6, 2"); e("s_add_u32 s%d, s%d, s6" % (sH, sH)); e("s_lshr_b32 s%d, s7, 2" % sBt)
    if nomap:
        e("s_and_b32 s%d, s2, 31" % sH); e("s_lshr_b32 s%d, s2, 5" % sBt)
    e("s_mov_b32 s%d, %s" % (sScale, f32(128 ** -0.5)))
    e("s_mov_b32 s%d, %s" % (sLog2e, f32(1.4426950408889634)))
    e("s_mov_b32 s%d, 0xffff0000" % sHi)
    if stamps: e("v_mov_b32 v54, 0")
    e("v_and_b32 v%d, 15, v0" % vT0)
    e("v_lshrrev_b32 v%d, 4, v0" % vG)
    e("v_lshlrev_b32 v%d, 4, v%d" % (vR16, vT0))
    e("v_lshlrev_b32 v%d, 4, v0" % vKV)
    e("s_lshl_b32 s6, s%d, %d" % (sW, {0: 13, 1: 16, 2: 14, 3: 15, 4: 12, 5: 10, 6: 11}[pat]))
    e("v_add_u32 v%d, s6, v%d" % (vKV, vKV))
    e("s_mul_i32 s7, s%d, 36" % sW)
    e("v_min_u32 v%d, 8, v%d" % (vT1, vT0))
    e("v_lshl_add_u32 v%d, v%d, 2, v%d" % (vT1, vT1, vG))
    e("v_add_u32 v%d, s7, v%d" % (vT1, vT1))
    e("v_lshlrev_b32 v%d, 1, v%d" % (vT1, vT1))
    e("v_add_u32 v%d, s7, v%d" % (vW, vG))
    e("v_lshlrev_b32 v%d, 13, v%d" % (vW, vW))
    e("v_add_u32 v%d, v%d, v%d" % (vW, vW, vR16))
    e("s_lshl_b32 s%d, s%d, 5" % (sKV, sBt)); e("s_add_u32 s%d, s%d, s%d" % (sKV, sKV, sH)); e("s_lshl_b32 s%d, s%d, 20" % (sKV, sKV))
    e("s_mul_i32 s%d, s%d, 1152" % (sA, sBt))
    e("s_lshl_b32 s%d, s%d, 8" % (sB2, sH))
    e("s_waitcnt lgkmcnt(0)")
    stamp()
    make_srd(sX, pX, sA, 1152)
    opx = a.vmem("buffer_load_ushort v%d, v%d, %s, 0 offen" % (vXc, vT1, srd(sX)))
    make_srd(sWQ, pWQ, sB2, 575 * 8192 + 256)
    make_srd(sK, pK, None, 0x10000000)
    make_srd(sV, pV, None, 0x10000000)

    late = []

    stream = []
    state = {"soff": None, "wtype": "wq"}
    def soff(val):
        if val == 0:
            return "0"
        if state["soff"] != val:
            e("s_mov_b32 s%d, 0x%x" % (sTmp, val)); state["soff"] = val
        return "s%d" % sTmp
    def kvsoff(val):
        if state.get("kv") != val:
            e("s_add_u32 s%d, s%d, 0x%x" % (sOff, sKV, val)); state["kv"] = val
        return "s%d" % sOff

    def wq_item(i):
        def issue(s):
            return a.vmem(("buffer_load_dwordx4 %s, v%d, %s, %s offen" + WF) % (vr(s), vW, srd(sWQ), soff(i * 32768)))
        def pre():
            if i == 0:
                a.wait_vm(opx)
                e("v_lshl_or_b32 v%d, v%d, 16, v%d" % (vXc, vXc, vXc))
            buildB(i & 1, vXc, i)
        def consume(s):
            mfma(vAcc, i & 1, s, first=(i == 0))
        def post():
            if i != 8: return
            e("s_lshl_b32 s6, s%d, 9" % sW)
            e("v_lshlrev_b32 v%d, 1, v%d" % (vT0, vR16))
            e("v_lshl_add_u32 v%d, v%d, 4, v%d" % (vT0, vG, vT0))
            e("v_add_u32 v%d, s6, v%d" % (vT1, vT0))
            exec_lo32()
            e("ds_write_b128 v%d, %s offset:%d" % (vT1, vr(vAcc), QP))
            exec_all()
            barrier()
            L = newlabel("qred")
            e("s_cmp_ge_u32 s%d, 2" % sW); e("s_cbranch_scc1 %s" % L)
            e("s_lshl_b32 s6, s%d, 6" % sW)
            e("v_add_u32 v%d, s6, v0" % vT1)
            e("v_lshlrev_b32 v%d, 2, v%d" % (vX0, vT1))
            for w in range(16):
                e("ds_read_b32 v%d, v%d offset:%d" % (vAcc + w, vX0, QP + 512 * w))
            e("s_waitcnt lgkmcnt(0)")
            for st in (8, 4, 2, 1):
                for w in range(st):
                    e("v_add_f32 v%d, v%d, v%d" % (vAcc + w, vAcc + w, vAcc + w + st))
            e("v_cvt_pk_bf16_f32 v%d, v%d, v%d" % (vAcc, vAcc, vAcc))
            e("v_lshlrev_b32 v%d, 1, v%d" % (vT1, vT1))
            e("ds_write_b16 v%d, v%d offset:%d" % (vT1, vAcc, QB))
            e("%s:" % L)
            barrier()
            e("ds_read_b128 %s, v%d offset:%d" % (vr(vQ), vR16, QB))
            e("s_waitcnt lgkmcnt(0)")
            if dbg:
                e("buffer_store_dwordx4 %s, v%d, %s, s95 offen" % (vr(vQ), vR16, srd(sWS)))
            stamp()
        return Item(issue, consume, pre, post)
    for i in range(9):
        stream.append(wq_item(i))

    BANK_OF = {0: 0, 1: 2, 2: 1, 3: 3}
    def boff(t):
        return {0: t * 131072, 1: t * 8192, 2: (t >> 1) * 262144 + (t & 1) * 8192, 3: (t >> 2) * 524288 + (t & 3) * 8192}[pat]
    def kvaddr(t, i):
        if pat == 4: return t * 131072 + (i // 4) * 65536, (i % 4) * 1024
        if pat == 5: return t * 131072 + i * 16384, 0
        if pat == 6: return t * 131072 + (i // 2) * 32768, (i % 2) * 1024
        return boff(t) + (i // 4) * 4096, (i % 4) * 1024
    def k_item(t, i):
        def issue(s):
            o, im = kvaddr(t, i)
            so = kvsoff(o)
            return a.vmem("buffer_load_dwordx4 %s, v%d, %s, %s offen offset:%d nt" % (vr(s), vKV, srd(sK), so, im))
        def consume(s):
            e("v_dot2_f32_bf16 v%d, v%d, v%d, 0" % (vS + i, s, vQ))
            for d in (1, 2, 3):
                e("v_dot2_f32_bf16 v%d, v%d, v%d, v%d" % (vS + i, s + d, vQ + d, vS + i))
        def post():
            if i != 7: return
            for half in (0, 1):
                s0 = vS + 4 * half; t0 = vT + 2 * half
                e("v_add_f32_dpp v%d, v%d, v%d row_ror:8 row_mask:0xf bank_mask:0x3" % (t0, s0, s0))
                e("v_add_f32_dpp v%d, v%d, v%d row_ror:8 row_mask:0xf bank_mask:0xc" % (t0, s0 + 1, s0 + 1))
                e("v_add_f32_dpp v%d, v%d, v%d row_ror:8 row_mask:0xf bank_mask:0x3" % (t0 + 1, s0 + 2, s0 + 2))
                e("v_add_f32_dpp v%d, v%d, v%d row_ror:8 row_mask:0xf bank_mask:0xc" % (t0 + 1, s0 + 3, s0 + 3))
            for half in (0, 1):
                t0 = vT + 2 * half
                e("v_add_f32_dpp v%d, v%d, v%d row_half_mirror row_mask:0xf bank_mask:0x5" % (vU + half, t0, t0))
                e("v_add_f32_dpp v%d, v%d, v%d row_half_mirror row_mask:0xf bank_mask:0xa" % (vU + half, t0 + 1, t0 + 1))
            for qp in ("[1,0,3,2]", "[2,3,0,1]"):
                for half in (0, 1):
                    e("v_add_f32_dpp v%d, v%d, v%d quad_perm:%s row_mask:0xf bank_mask:0xf" % (vU + half, vU + half, vU + half, qp))
            bf16r2(vU, vU + 1, vT)
            e("v_mul_f32 v%d, s%d, v%d" % (vU, sScale, vU)); e("v_mul_f32 v%d, s%d, v%d" % (vU + 1, sScale, vU + 1))
            bf16r2(vU, vU + 1, vT)
            e("v_max_f32 v%d, v%d, v%d" % (vN, vU, vU + 1))
            e("v_max_f32_dpp v%d, v%d, v%d row_ror:4 row_mask:0xf bank_mask:0xf" % (vN, vN, vN))
            e("v_max_f32_dpp v%d, v%d, v%d row_ror:8 row_mask:0xf bank_mask:0xf" % (vN, vN, vN))
            cross_row("v_max_f32", vN, init=vM)
            e("v_sub_f32 v%d, v%d, v%d" % (vAl, vM, vN))
            e("v_sub_f32 v%d, v%d, v%d" % (vU, vU, vN))
            e("v_sub_f32 v%d, v%d, v%d" % (vU + 1, vU + 1, vN))
            for r in (vAl, vU, vU + 1):
                e("v_mul_f32 v%d, s%d, v%d" % (r, sLog2e, r))
            for r in (vAl, vU, vU + 1):
                e("v_exp_f32 v%d, v%d" % (r, r))
            e("v_mov_b32 v%d, v%d" % (vM, vN))
            e("v_fma_f32 v%d, v%d, v%d, v%d" % (vL, vL, vAl, vU))
            e("v_add_f32 v%d, v%d, v%d" % (vL, vL, vU + 1))
            for k in range(4):
                e("v_mul_f32 v%d, v%d, v%d" % (vO + k, vO + k, vAl))
            e("v_cvt_pk_bf16_f32 v%d, v%d, v%d" % (vU, vU, vU))
            e("v_cvt_pk_bf16_f32 v%d, v%d, v%d" % (vU + 1, vU + 1, vU + 1))
            stamp()
        return Item(issue, consume, None, post)
    def v_item(t, i):
        def issue(s):
            o, im = kvaddr(t, i)
            so = kvsoff(o)
            return a.vmem("buffer_load_dwordx4 %s, v%d, %s, %s offen offset:%d nt" % (vr(s), vKV, srd(sV), so, im))
        def pre():
            buildB(i & 1, vU + (i >> 2), 4 * BANK_OF[i & 3])
        def consume(s):
            mfma(vO, i & 1, s)
        def post():
            if i == 7 and (sync >> t) & 1: e("s_barrier")
        return Item(issue, consume, pre, post)
    def add_kv(t):
        for i in range(8): stream.append(k_item(t, i))
        for i in range(8): stream.append(v_item(t, i))

    gslots = []
    def gv_item(j):
        def issue(s):
            if j == 0:
                e("v_lshlrev_b32 v%d, 4, v0" % vW)
            return a.vmem("buffer_load_dwordx4 %s, v%d, %s, 0 offen offset:%d" % (vr(s), vW, srd(sX if j < 2 else sGW), (j & 1) * 1024))
        def consume(s):
            gslots.append(s)
            if j != 3: return
            acc = vAcc; x0, x1, g0, g1, pk = vAcc + 1, vAcc + 2, vAcc + 3, vAcc + 4, vAcc + 5
            e("v_mov_b32 v%d, 0" % acc)
            for p in (0, 1):
                for d in range(4):
                    xs = gslots[p] + d; gs = gslots[2 + p] + d
                    e("v_lshlrev_b32 v%d, 16, v%d" % (x0, xs)); e("v_and_b32 v%d, s%d, v%d" % (x1, sHi, xs))
                    e("v_lshlrev_b32 v%d, 16, v%d" % (g0, gs)); e("v_and_b32 v%d, s%d, v%d" % (g1, sHi, gs))
                    e("v_mul_f32 v%d, v%d, v%d" % (x0, x0, g0)); e("v_mul_f32 v%d, v%d, v%d" % (x1, x1, g1))
                    bf16r2(x0, x1, pk)
                    e("v_add_f32 v%d, v%d, v%d" % (acc, acc, x0)); e("v_add_f32 v%d, v%d, v%d" % (acc, acc, x1))
            row_allreduce("v_add_f32", [acc])
            cross_row("v_add_f32", acc)
            bf16r(acc)
            e("v_mul_f32 v%d, s%d, v%d" % (acc, sLog2e, acc))
            e("v_sub_f32 v%d, 0, v%d" % (acc, acc))
            e("v_exp_f32 v%d, v%d" % (acc, acc))
            e("v_add_f32 v%d, 1.0, v%d" % (acc, acc))
            e("v_rcp_f32 v%d, v%d" % (vGate, acc))
            bf16r(vGate)
            e("v_sub_f32 v%d, 1.0, v%d" % (vOmg, vGate))
            bf16r(vOmg)
        return Item(issue, consume, None, None, defer=(j != 3))

    def gu_item(i, which):
        def issue(s):
            if i == 0 and which == 0:
                e("s_mul_i32 s7, s%d, 36" % sW)
                e("v_add_u32 v%d, s7, v%d" % (vW, vG))
                e("v_mul_u32_u24 v%d, 9216, v%d" % (vW, vW))
                e("v_and_b32 v%d, 16, v%d" % (vX0 + 7, vR16))
                e("v_add3_u32 v%d, v%d, v%d, 64" % (vX0 + 7, vX0 + 7, vW))
                e("v_add_u32 v%d, 192, v%d" % (vX0 + 7, vX0 + 7))
                e("v_add_u32 v%d, v%d, v%d" % (vW, vW, vR16))
            so = soff(i * 36864)
            if which < 2:
                return a.vmem(("buffer_load_dwordx4 %s, v%d, %s, %s offen" + WF) % (vr(s), vW, srd(sWG if which == 0 else sWU), so))
            e("s_mov_b32 exec_lo, 0x00030003"); e("s_mov_b32 exec_hi, 0x00030003")
            a.vmem(("buffer_load_dwordx4 %s, v%d, %s, %s offen" + WF) % (vr(s), vX0 + 7, srd(sWG), so))
            e("s_mov_b32 exec_lo, 0x000c000c"); e("s_mov_b32 exec_hi, 0x000c000c")
            op = a.vmem(("buffer_load_dwordx4 %s, v%d, %s, %s offen" + WF) % (vr(s), vX0 + 7, srd(sWU), so))
            exec_all()
            return op
        def pre():
            if which == 0:
                buildB(i & 1, vXc, i)
        def consume(s):
            mfma(vAcc + 4 * which, i & 1, s, first=(i == 0))
        def post():
            if not (i == 8 and which == 2): return
            e("s_mul_i32 s6, s%d, 1536" % sW)
            e("v_add_u32 v%d, s6, v%d" % (vT1, vT0))
            exec_lo32()
            for c in range(3):
                e("ds_write_b128 v%d, %s offset:%d" % (vT1, vr(vAcc + 4 * c), GU + 512 * c))
            exec_all()
            barrier()
            L = newlabel("hred")
            e("s_cmp_ge_u32 s%d, 3" % sW); e("s_cbranch_scc1 %s" % L)
            e("s_lshl_b32 s6, s%d, 6" % sW)
            e("v_add_u32 v%d, s6, v0" % vT1)
            e("s_cmp_eq_u32 s%d, 2" % sW)
            e("s_cselect_b32 s6, 512, 0"); e("s_cselect_b32 s7, 64, 0"); e("s_add_u32 s7, s7, 512")
            e("v_lshlrev_b32 v%d, 2, v%d" % (vX0, vT1))
            e("v_add_u32 v%d, s7, v%d" % (vX0 + 1, vX0))
            e("v_add_u32 v%d, s6, v%d" % (vX0, vX0))
            for base, ad, dst in ((0, vX0, vX0 + 2), (0, vX0 + 1, vX0 + 3)):
                for w in range(16):
                    e("ds_read_b32 v%d, v%d offset:%d" % (vAcc + w, ad, GU + 1536 * w))
                e("s_waitcnt lgkmcnt(0)")
                for st in (8, 4, 2):
                    for w in range(st):
                        e("v_add_f32 v%d, v%d, v%d" % (vAcc + w, vAcc + w, vAcc + w + st))
                e("v_add_f32 v%d, v%d, v%d" % (dst, vAcc, vAcc + 1))
            g, u = vX0 + 2, vX0 + 3
            bf16r2(g, u, vAcc)
            y = vAcc
            c0 = 0.7978845608028654; c1 = c0 * 0.044715
            e("v_mul_f32 v%d, v%d, v%d" % (y, g, g))
            e("s_mov_b32 s6, %s" % f32(c1)); e("v_mov_b32 v%d, %s" % (vAcc + 1, f32(c0)))
            e("v_fma_f32 v%d, v%d, s6, v%d" % (y, y, vAcc + 1))
            e("v_mul_f32 v%d, v%d, v%d" % (y, y, g))
            e("v_mul_f32 v%d, %s, v%d" % (y, f32(-2.0 * 1.4426950408889634), y))
            e("v_exp_f32 v%d, v%d" % (y, y))
            e("v_add_f32 v%d, 1.0, v%d" % (y, y))
            e("v_rcp_f32 v%d, v%d" % (y, y))
            e("v_mul_f32 v%d, v%d, v%d" % (y, y, g))
            bf16r(y)
            e("v_mul_f32 v%d, v%d, v%d" % (y, y, u))
            if dbg:
                e("v_lshlrev_b32 v%d, 2, v%d" % (vAcc + 2, vT1))
                e("buffer_store_dword v%d, v%d, %s, s95 offen offset:1024" % (y, vAcc + 2, srd(sWS)))
                e("buffer_store_dword v%d, v%d, %s, s95 offen offset:2048" % (g, vAcc + 2, srd(sWS)))
                e("s_nop 3")
            e("v_cvt_pk_bf16_f32 v%d, v%d, v%d" % (y, y, y))
            e("v_cmp_gt_u32 vcc, 144, v%d" % vT1)
            e("v_cndmask_b32 v%d, 0, v%d, vcc" % (y, y))
            e("v_lshlrev_b32 v%d, 1, v%d" % (vT1, vT1))
            e("ds_write_b16 v%d, v%d offset:%d" % (vT1, y, HB))
            e("%s:" % L)
        return Item(issue, consume, pre, post)

    def publish(part, ldsbase):
        e("s_lshl_b32 s6, s%d, 8" % sW)
        e("v_lshl_add_u32 v%d, v0, 2, s6" % vX0)
        if ldsbase + 2560 * 15 > 65535:
            e("v_add_u32 v%d, 0x%x, v%d" % (vX0 + 1, ldsbase, vX0)); ad = vX0 + 1; lb = 0
        else:
            ad = vX0; lb = ldsbase
        for w in range(16):
            e("ds_read_b32 v%d, v%d offset:%d" % (vAcc + w, ad, lb + 2560 * w))
        e("s_waitcnt lgkmcnt(0)")
        for st in (8, 4, 2, 1):
            for w in range(st):
                e("v_add_f32 v%d, v%d, v%d" % (vAcc + w, vAcc + w, vAcc + w + st))
        e("v_lshlrev_b32 v%d, 2, v0" % vX0)
        e("s_add_u32 s6, s%d, %d" % (sWsOff, part * 8192))
        return "buffer_store_dword v%d, v%d, %s, s6 offen sc1" % (vAcc, vX0, srd(sWS))

    def write_out_partials(ldsbase):
        e("s_mul_i32 s6, s%d, 2560" % sW)
        e("s_add_u32 s6, s6, %d" % ldsbase)
        e("v_add_u32 v%d, s6, v%d" % (vT1, vT0))
        exec_lo32()
        for c in range(5):
            e("ds_write_b128 v%d, %s offset:%d" % (vT1, vr(vAcc + 4 * c), 512 * c))
        exec_all()

    def dn_item(i, c):
        def issue(s):
            if i == 0 and c == 0:
                e("s_lshl_b32 s7, s%d, 2" % sW)
                e("v_add_u32 v%d, s7, v%d" % (vW, vG))
                e("v_mul_u32_u24 v%d, 1152, v%d" % (vW, vW))
                e("v_add_u32 v%d, v%d, v%d" % (vW, vW, vR16))
            return a.vmem(("buffer_load_dwordx4 %s, v%d, %s, %s offen offset:%d" + WF) % (vr(s), vW, srd(sWD), soff(i * 73728), c * 256))
        def pre():
            if i == 0 and c == 0:
                barrier()
                e("v_lshrrev_b32 v%d, 4, v%d" % (vT1, vR16))
                e("v_min_u32 v%d, 2, v%d" % (vT1, vT1))
                e("v_lshl_add_u32 v%d, v%d, 6, v%d" % (vT1, vT1, vG))
                e("s_lshl_b32 s7, s%d, 2" % sW)
                e("v_add_u32 v%d, s7, v%d" % (vT1, vT1))
                e("v_lshlrev_b32 v%d, 1, v%d" % (vT1, vT1))
                e("ds_read_u16 v%d, v%d offset:%d" % (vXc, vT1, HB))
                e("s_waitcnt lgkmcnt(0)")
                e("v_lshl_or_b32 v%d, v%d, 16, v%d" % (vXc, vXc, vXc))
            if c == 0:
                buildB(i & 1, vXc, i)
        def consume(s):
            mfma(vAcc + 4 * c, i & 1, s, first=(i == 0))
        def post():
            if not (i == 2 and c == 4): return
            write_out_partials(DP)
            barrier()
            L = newlabel("bpub")
            e("s_cmp_ge_u32 s%d, 9" % sW); e("s_cbranch_scc1 %s" % L)
            e(publish(1, DP))
            e("%s:" % L)
        return Item(issue, consume, pre, post)

    vOc = vX0 + 4
    def wo_item(i, c):
        def issue(s):
            if i == 0 and c == 0:
                e("s_lshl_b32 s7, s%d, 3" % sW)
                e("v_add_u32 v%d, s7, v%d" % (vW, vG))
                e("v_mul_u32_u24 v%d, 1152, v%d" % (vW, vW))
                e("v_add_u32 v%d, v%d, v%d" % (vW, vW, vR16))
            return a.vmem(("buffer_load_dwordx4 %s, v%d, %s, %s offen offset:%d" + WF) % (vr(s), vW, srd(sWO), soff(i * 4608), c * 256))
        def pre():
            if i == 0 and c == 0:
                stamp()
                e("v_add_f32_dpp v%d, v%d, v%d row_ror:4 row_mask:0xf bank_mask:0xf" % (vL, vL, vL))
                e("v_add_f32_dpp v%d, v%d, v%d row_ror:8 row_mask:0xf bank_mask:0xf" % (vL, vL, vL))
                cross_row("v_add_f32", vL)
                e("s_mul_i32 s6, s%d, 528" % sW)
                e("v_add_u32 v%d, s6, v%d" % (vT1, vT0))
                exec_lo32()
                e("ds_write_b128 v%d, %s offset:%d" % (vT1, vr(vO), OP))
                e("s_mov_b32 exec_lo, 1")
                e("s_lshl_b32 s6, s%d, 3" % sW)
                e("v_mov_b32 v%d, s6" % vT1)
                e("v_mov_b32 v%d, v%d" % (vX0, vM)); e("v_mov_b32 v%d, v%d" % (vX0 + 1, vL))
                e("ds_write_b64 v%d, %s offset:%d" % (vT1, vr(vX0, 2), ML))
                exec_all()
                barrier()
                e("v_lshrrev_b32 v%d, 1, v%d" % (vT1, vR16))
                e("ds_read_b64 %s, v%d offset:%d" % (vr(vX0, 2), vT1, ML))
                e("v_lshrrev_b32 v%d, 4, v%d" % (vT1, vR16))
                e("v_mul_u32_u24 v%d, 528, v%d" % (vT1, vT1))
                e("v_lshl_add_u32 v%d, v%d, 2, v%d" % (vT1, vG, vT1))
                e("s_lshl_b32 s6, s%d, 5" % sW)
                e("v_add_u32 v%d, s6, v%d" % (vT1, vT1))
                e("ds_read_b32 v%d, v%d offset:%d" % (vOc, vT1, OP))
                e("ds_read_b32 v%d, v%d offset:%d" % (vOc + 1, vT1, OP + 16))
                e("s_waitcnt lgkmcnt(0)")
                mr, lr, mm = vX0, vX0 + 1, vX0 + 2
                e("v_mov_b32 v%d, v%d" % (mm, mr))
                row_allreduce("v_max_f32", [mm])
                e("v_sub_f32 v%d, v%d, v%d" % (mr, mr, mm))
                e("v_mul_f32 v%d, s%d, v%d" % (mr, sLog2e, mr))
                e("v_exp_f32 v%d, v%d" % (mr, mr))
                for r in (lr, vOc, vOc + 1):
                    e("v_mul_f32 v%d, v%d, v%d" % (r, r, mr))
                row_allreduce("v_add_f32", [lr, vOc, vOc + 1])
                e("v_rcp_f32 v%d, v%d" % (lr, lr))
                for r in (vOc, vOc + 1):
                    e("v_mul_f32 v%d, v%d, v%d" % (r, r, lr))
                if dbg:
                    e("s_lshl_b32 s6, s%d, 5" % sW)
                    e("v_lshl_add_u32 v%d, v%d, 2, s6" % (vT1, vG))
                    e("buffer_store_dword v%d, v%d, %s, s95 offen offset:3072" % (vOc, vT1, srd(sWS)))
                    e("buffer_store_dword v%d, v%d, %s, s95 offen offset:3088" % (vOc + 1, vT1, srd(sWS)))
                    e("s_nop 3")
                for r in (vOc, vOc + 1):
                    e("v_cvt_pk_bf16_f32 v%d, v%d, v%d" % (r, r, r))
                buildB(0, vOc); buildB(1, vOc + 1)
                stamp()
        def consume(s):
            mfma(vAcc + 4 * c, i & 1, s, first=(i == 0))
        return Item(issue, consume, pre, None)

    for t in range(NB):
        add_kv(t)
        if t == ga:
            for j in range(4): stream.append(gv_item(j))
            for i in range(9):
                for which in range(3): stream.append(gu_item(i, which))
        if t == da:
            for i in range(3):
                for c in range(5): stream.append(dn_item(i, c))
    for i in range(2):
        for c in range(5): stream.append(wo_item(i, c))

    n = len(stream)
    slot = lambda p: RING0 + 4 * (p % R)
    for p in range(9 if early else R):
        stream[p].op = stream[p].issue(slot(p))
    if early == 2: e("s_setprio 0")
    e("v_and_b32 v%d, 16, v%d" % (vT1, vR16))
    e("v_mov_b32 v%d, 0xffff" % vT0)
    e("v_lshlrev_b32 v%d, v%d, v%d" % (vT0, vT1, vT0))
    e("v_lshrrev_b32 v%d, 5, v%d" % (vT1, vR16))
    for w in range(4):
        e("v_cmp_eq_u32 vcc, %d, v%d" % (w, vT1))
        e("v_cndmask_b32 v%d, 0, v%d, vcc" % (vMask + w, vT0))
    e("s_mul_i32 s%d, s%d, 288" % (sA, sH))
    make_srd(sWG, pWG, sA, 575 * 9216 + 288)
    make_srd(sWU, pWU, sA, 575 * 9216 + 288)
    e("s_mul_i32 s%d, s%d, %d" % (sA, sH, 144 * 1152))
    make_srd(sWD, pWD, sA, 144 * 1152)
    e("s_mul_i32 s%d, s%d, %d" % (sA, sH, 128 * 1152))
    make_srd(sWO, pWO, sA, 128 * 1152)
    make_srd(sGW, pGW, None, 1152)
    make_srd(sWS, pWS, None, (64 << 20) if (dbg or stamps) else 8 * 9 * 2 * 32 * 256)
    if dbg:
        e("s_lshl_b32 s95, s%d, 5" % sBt); e("s_add_u32 s95, s95, s%d" % sH); e("s_lshl_b32 s95, s95, 12"); e("s_add_u32 s95, s95, 0x400000")
    make_srd(sOUT, pOUT, None, 4608 * 2)
    make_srd(sDBG, pDBG, None, 256)
    e("s_mul_i32 s%d, s%d, 9" % (sC, sBt)); e("s_add_u32 s%d, s%d, s%d" % (sC, sC, sW))
    e("s_lshl_b32 s%d, s%d, 6" % (sWsOff, sC)); e("s_add_u32 s%d, s%d, s%d" % (sWsOff, sWsOff, sH))
    e("s_lshl_b32 s%d, s%d, 8" % (sWsOff, sWsOff))
    e("v_mov_b32 v%d, 0" % vT1)
    e("ds_write_b32 v%d, v%d offset:%d" % (vT1, vT1, C8))
    e("ds_write_b32 v%d, v%d offset:%d" % (vT1, vT1, C9))
    e("v_mov_b32 v%d, 0xff7fffff" % vM)
    e("v_mov_b32 v%d, 0" % vL)
    for k in range(4): e("v_mov_b32 v%d, 0" % (vO + k))

    if early:
        a.wait_vm(opx)
        for p in range(9, R):
            stream[p].op = stream[p].issue(slot(p))
    pend = []
    for p in range(n):
        it = stream[p]
        if it.pre: it.pre()
        a.wait_vm(it.op)
        if it.consume: it.consume(slot(p))
        pend.append(p)
        if not it.defer:
            for q in pend:
                if q + R < n:
                    stream[q + R].op = stream[q + R].issue(slot(q))
            pend = []
        if it.post: it.post()

    write_out_partials(AP)
    barrier()
    stamp()
    e("s_cmp_ge_u32 s%d, 9" % sW); e("s_cbranch_scc1 %s" % ("L_st" if stamps else "L_done"))
    e(publish(0, AP))
    e("s_waitcnt vmcnt(0)")
    stamp()
    e("v_mov_b32 v%d, 1" % vX0); e("v_mov_b32 v%d, 0" % (vX0 + 1))
    e("s_mov_b32 exec_lo, 1"); e("s_mov_b32 exec_hi, 0")
    e("ds_add_rtn_u32 v%d, v%d, v%d offset:%d" % (vX0 + 2, vX0 + 1, vX0, C8))
    e("s_waitcnt lgkmcnt(0)")
    e("v_readfirstlane_b32 s7, v%d" % (vX0 + 2))
    e("s_nop 3")
    e("s_cmp_lg_u32 s7, 8"); e("s_cbranch_scc1 L_arw")
    e("s_lshl_b32 s6, s%d, 4" % sBt); e("v_mov_b32 v%d, s6" % (vX0 + 2))
    e("buffer_atomic_add v%d, v%d, %s, 0 offen sc0" % (vX0, vX0 + 2, srd(sDBG)))
    e("s_waitcnt vmcnt(0)")
    e("v_add_u32 v%d, 1, v%d" % (vX0, vX0))
    e("ds_write_b32 v%d, v%d offset:%d" % (vX0 + 1, vX0, C9))
    e("L_arw:")
    e("ds_read_b32 v%d, v%d offset:%d" % (vX0 + 2, vX0 + 1, C9))
    e("s_waitcnt lgkmcnt(0)")
    e("v_readfirstlane_b32 s%d, v%d" % (sA, vX0 + 2))
    e("s_nop 3")
    e("s_cmp_eq_u32 s%d, 0" % sA); e("s_cbranch_scc1 L_arw")
    exec_all()
    stamp()
    e("s_cmp_lg_u32 s%d, 32" % sA); e("s_cbranch_scc1 %s" % ("L_st" if stamps else "L_done"))
    e("s_lshl_b32 s6, s%d, 14" % sC)
    e("v_lshlrev_b32 v%d, 4, v0" % vX0)
    for part in range(2):
        for i in range(8):
            if i % 4 == 0:
                e("s_add_u32 s7, s6, %d" % (part * 8192 + (i // 4) * 4096))
            e("buffer_load_dwordx4 %s, v%d, %s, s7 offen offset:%d sc1" % (vr(RING0 + 4 * (part * 8 + i)), vX0, srd(sWS), (i % 4) * 1024))
    for part in range(2):
        e("s_waitcnt vmcnt(%d)" % (8 - 8 * part))
        b0 = RING0 + 32 * part
        for st in (4, 2, 1):
            for i in range(st):
                for d in range(4):
                    e("v_add_f32 v%d, v%d, v%d" % (b0 + 4 * i + d, b0 + 4 * i + d, b0 + 4 * (i + st) + d))
        e("v_permlane32_swap_b32 v%d, v%d" % (b0, b0 + 2))
        e("v_permlane32_swap_b32 v%d, v%d" % (b0 + 1, b0 + 3))
        e("v_add_f32 v%d, v%d, v%d" % (b0, b0, b0 + 2))
        e("v_add_f32 v%d, v%d, v%d" % (b0 + 1, b0 + 1, b0 + 3))
        e("v_permlane16_swap_b32 v%d, v%d" % (b0, b0 + 1))
        e("v_add_f32 v%d, v%d, v%d" % (b0, b0, b0 + 1))
    A, Bq = RING0, RING0 + 32
    bf16r2(A, Bq, vX0 + 1)
    e("v_mul_f32 v%d, v%d, v%d" % (A, A, vGate)); e("v_mul_f32 v%d, v%d, v%d" % (Bq, Bq, vOmg))
    bf16r2(A, Bq, vX0 + 1)
    e("v_add_f32 v%d, v%d, v%d" % (A, A, Bq))
    e("v_cvt_pk_bf16_f32 v%d, v%d, v%d" % (A, A, A))
    e("s_mul_i32 s6, s%d, 576" % sBt); e("s_lshl_b32 s7, s%d, 6" % sW); e("s_add_u32 s6, s6, s7")
    e("v_lshrrev_b32 v%d, 2, v%d" % (vX0, vR16))
    e("v_add3_u32 v%d, v%d, v%d, s6" % (vX0, vX0, vG))
    e("v_lshlrev_b32 v%d, 1, v%d" % (vX0, vX0))
    e("buffer_store_short v%d, v%d, %s, 0 offen" % (A, vX0, srd(sOUT)))
    if stamps:
        e("s_waitcnt vmcnt(0)")
        stamp()
        e("L_st:")
        e("s_lshl_b32 s6, s2, 4"); e("s_add_u32 s6, s6, s%d" % sW); e("s_lshl_b32 s6, s6, 8"); e("s_add_u32 s6, s6, 0x800000")
        e("v_lshlrev_b32 v%d, 2, v0" % vX0)
        e("s_nop 4")
        e("buffer_store_dword v54, v%d, %s, s6 offen" % (vX0, srd(sWS)))
    e("L_done:")
    e("s_endpgm")

    body = a.finish()
    nv = RING0 + 4 * R
    assert nv <= 128 and 16 <= R
    out = [HDR.rstrip(), "; @launch grid=(256,1,1) block=(1024,1,1) lds=%d" % LDS_BYTES,
           '.amdgcn_target "amdgcn-amd-amdhsa--gfx950"', ".text", ".globl %s" % KN, ".p2align 8",
           ".type %s,@function" % KN, "%s:" % KN] + body + [
           '.section .rodata,"a"', ".p2align 6", ".amdhsa_kernel %s" % KN,
           "  .amdhsa_next_free_vgpr 128", "  .amdhsa_next_free_sgpr 102", "  .amdhsa_accum_offset 128",
           "  .amdhsa_group_segment_fixed_size 0", "  .amdhsa_kernarg_size 104", "  .amdhsa_user_sgpr_count 2",
           "  .amdhsa_user_sgpr_kernarg_segment_ptr 1", "  .amdhsa_system_sgpr_workgroup_id_x 1", ".end_amdhsa_kernel"]
    return "\n".join(out) + "\n"

if __name__ == "__main__":
    dst = sys.argv[1] if len(sys.argv) > 1 else "gated_mix__mha_block_cached__glu_gated_geglu__decode.s"
    kw = {}
    for x in sys.argv[2:]:
        k, v = x.split("=")
        kw[k] = int(v)
    open(dst, "w").write(gen(**kw))
    print("wrote", dst, "LDS", LDS_BYTES)
```
